```python
import torch

def _softmax(x, axis=-1):
    return torch.softmax(x, dim=axis)
def _gelu(x):
    return torch.nn.functional.gelu(x, approximate="tanh")
def _silu(x):
    return torch.nn.functional.silu(x)
def _sigmoid(x):
    return torch.sigmoid(x)
def _layernorm(x, axis=-1, eps=1e-5):
    m = x.mean(dim=axis, keepdim=True)
    v = x.var(dim=axis, keepdim=True, unbiased=False)
    return (x - m) / torch.sqrt(v + eps)
def _scatter_add(tgt, idx, src, axis=0):
    return tgt.clone().index_add_(axis, idx, src)
def _segment_sum(src, seg, n):
    out = torch.zeros((n,) + src.shape[1:], dtype=src.dtype)
    return out.index_add_(0, seg, src)
def _pad(x, pw):
    flat = tuple(v for pair in reversed(pw) for v in pair)
    return torch.nn.functional.pad(x, flat)

kernel_name = 'recurrent_scan__gqa_block_cached__glu_gated_geglu__decode'

def setup_inputs():

    _w = (lambda a: (lambda t: t.to(torch.bfloat16) if t.is_floating_point() else t)(torch.as_tensor(a)))
    def _A_setup():
        B, Sq, D = 1, 1, 512
        Hq, Hkv, Sk, Dh = 32, 8, 32768, 128
        assert Hq % Hkv == 0, (Hq, Hkv)
        return {
            "x": _w((lambda *s: torch.randn(*s, dtype=torch.bfloat16) * 0.4)(B, Sq, D)),
            "k_cache": _w((lambda *s: torch.randn(*s, dtype=torch.bfloat16) * 1.6)(B, Hkv, Sk, Dh)),
            "v_cache": _w((lambda *s: torch.randn(*s, dtype=torch.bfloat16) * 1.6)(B, Hkv, Sk, Dh)),
            "wq": _w((lambda *s: torch.randn(*s, dtype=torch.bfloat16) * 1.6)(D, Hq * Dh) * (D ** -0.5)),
            "wo": _w((lambda *s: torch.randn(*s, dtype=torch.bfloat16) * 1.6)(Hq * Dh, D) * ((Hq * Dh) ** -0.5)),
        }
    _A_in = _A_setup()

    def _B_setup():
        B, S, Dm, Df = 1, 1, 512, 1792
        return {
            "x": _w((lambda *s: torch.randn(*s, dtype=torch.bfloat16) * 0.4)(B, S, Dm)),
            "w_gate": _w((lambda *s: torch.randn(*s, dtype=torch.bfloat16) * 1.6)(Dm, Df) * (Dm ** -0.5)),
            "w_up": _w((lambda *s: torch.randn(*s, dtype=torch.bfloat16) * 1.6)(Dm, Df) * (Dm ** -0.5)),
            "w_down": _w((lambda *s: torch.randn(*s, dtype=torch.bfloat16) * 1.6)(Df, Dm) * (Df ** -0.5)),
        }
    _B_in = _B_setup()

    return {
        "A_x": _A_in["x"],
        "A_k_cache": _A_in["k_cache"],
        "A_v_cache": _A_in["v_cache"],
        "A_wq": _A_in["wq"],
        "A_wo": _A_in["wo"],
        "B_x": _B_in["x"],
        "B_w_gate": _B_in["w_gate"],
        "B_w_up": _B_in["w_up"],
        "B_w_down": _B_in["w_down"],
    }

def reference(A_x, A_k_cache, A_v_cache, A_wq, A_wo, B_x, B_w_gate, B_w_up, B_w_down):
    def _A_ref(x, k_cache, v_cache, wq, wo):
        B, Sq, D = x.shape
        Hq, Dh = 32, 128
        Hkv = k_cache.shape[1]
        rep = Hq // Hkv
        q = (lambda x, *d: x.permute(*d))((x @ wq).reshape(B, Sq, Hq, Dh), 0, 2, 1, 3)
        k = (lambda x, n, axis: torch.repeat_interleave(x, n, dim=axis))(k_cache, rep, axis=1)
        v = (lambda x, n, axis: torch.repeat_interleave(x, n, dim=axis))(v_cache, rep, axis=1)
        scores = torch.einsum("bhqd,bhkd->bhqk", q, k) * (Dh ** -0.5)
        p = _softmax(scores, axis=-1)
        o = torch.einsum("bhqk,bhkd->bhqd", p, v)
        return (lambda x, *d: x.permute(*d))(o, 0, 2, 1, 3).reshape(B, Sq, Hq * Dh) @ wo

    def _B_ref(x, w_gate, w_up, w_down):
        g = torch.einsum("bsd,df->bsf", x, w_gate)
        u = torch.einsum("bsd,df->bsf", x, w_up)
        h = _gelu(g) * u
        return torch.einsum("bsf,fd->bsd", h, w_down)

    x = A_x
    xn = _layernorm(x, axis=-1)
    s = _A_ref(xn, A_k_cache, A_v_cache, A_wq, A_wo)
    g = _silu(_B_ref(xn, B_w_gate, B_w_up, B_w_down))
    return x + s * g
```

```python
import re

TRANS = ("v_exp_f32", "v_log_f32", "v_rcp_f32", "v_rsq_f32", "v_sqrt_f32", "v_sin_f32", "v_cos_f32")

def regs_of(op):
    op = op.strip()
    if op.startswith("-"): op = op[1:]
    m = re.fullmatch(r"abs\((.*)\)", op)
    if m: op = m.group(1)
    m = re.fullmatch(r"([vsa])(\d+)", op)
    if m: return {(m.group(1), int(m.group(2)))}
    m = re.fullmatch(r"([vsa])\[(\d+):(\d+)\]", op)
    if m: return {(m.group(1), i) for i in range(int(m.group(2)), int(m.group(3)) + 1)}
    if op in ("vcc", "vcc_lo", "vcc_hi"): return {("vcc", 0)}
    if op in ("exec", "exec_lo", "exec_hi"): return {("exec", 0)}
    if op == "m0": return {("m0", 0)}
    return set()

class Ins:
    def __init__(self, text):
        self.text = text
        t = text.split(";")[0].strip()
        parts = t.split(None, 1)
        self.mn = parts[0]
        rest = parts[1] if len(parts) > 1 else ""
        ops = []; cur = ""; depth = 0
        for ch in rest:
            if ch == "[": depth += 1
            if ch == "]": depth -= 1
            if ch == "," and depth == 0:
                ops.append(cur.strip()); cur = ""
            else: cur += ch
        if cur.strip(): ops.append(cur.strip())
        self.mods = ""
        if ops:
            sp = ops[-1].split(None, 1)
            ops[-1] = sp[0]
            if len(sp) > 1: self.mods = sp[1]
        self.ops = ops
        mn = self.mn
        self.is_mfma = mn.startswith("v_mfma")
        self.is_valu = mn.startswith("v_") and not self.is_mfma
        self.is_trans = any(mn.startswith(x) for x in TRANS)
        self.is_dpp = "_dpp" in mn
        self.is_perml = mn.startswith("v_permlane")
        self.is_rdlane = mn.startswith("v_readlane") or mn.startswith("v_readfirstlane")
        self.is_vmem = mn.startswith(("buffer_", "global_", "flat_"))
        self.is_ds = mn.startswith("ds_")
        self.is_store = self.is_vmem and ("store" in mn or "atomic" in mn)
        self.is_salu = mn.startswith("s_")
        W = set(); R = set(); self.srcC = set(); self.srcAB = set(); self.stdata = set()
        o = [regs_of(x) for x in ops]
        if self.is_mfma:
            W |= o[0]; R |= o[1] | o[2] | o[3]; self.srcC = o[3]; self.srcAB = o[1] | o[2]
        elif self.is_perml:
            W |= o[0] | o[1]; R |= o[0] | o[1]
        elif self.is_valu:
            W |= o[0]
            k = 1
            if mn.startswith(("v_add_co", "v_sub_co", "v_addc_co", "v_subb_co", "v_div_scale", "v_mad_u64")):
                W |= o[1]; k = 2
            for x in o[k:]: R |= x
            if mn.startswith(("v_fmac", "v_dot2c", "v_pk_fmac")) or self.is_dpp and "bound_ctrl" not in self.mods:
                R |= o[0]
            if mn.startswith("v_cndmask") and len(ops) == 3: R |= {("vcc", 0)}
            if mn.startswith("v_cmpx"): W |= {("exec", 0)}
        elif self.is_vmem:
            if self.is_store:
                for x in o: R |= x
                if mn.startswith("global_"): self.stdata = o[1]
                else: self.stdata = o[0]
                if "x4" not in mn and "x3" not in mn: self.stdata = set()
            elif "lds" in self.mods.split():
                for x in o: R |= x
                R |= {("m0", 0)}
            else:
                W |= o[0]
                for x in o[1:]: R |= x
        elif self.is_ds:
            if mn.startswith(("ds_read", "ds_bpermute", "ds_permute", "ds_swizzle")):
                W |= o[0]
                for x in o[1:]: R |= x
            else:
                for x in o: R |= x
        elif self.is_salu:
            if mn.startswith(("s_cmp", "s_cbranch", "s_branch", "s_waitcnt", "s_nop", "s_barrier", "s_sleep", "s_endpgm", "s_setprio")):
                for x in o: R |= x
            else:
                if o: W |= o[0]
                for x in o[1:]: R |= x
        self.W = W; self.R = R
        self.states = 1
        if mn == "s_nop": self.states = int(ops[0], 0) + 1

def need(p, c):
    n = 0
    pv = {r for r in p.W if r[0] in "va"}
    ps = {r for r in p.W if r[0] in ("s", "vcc")}
    if p.is_valu:
        if c.is_dpp and pv & regs_of(c.ops[1]): n = max(n, 2)
        if c.is_perml and pv & c.R: n = max(n, 2)
        if c.is_rdlane and pv & c.R: n = max(n, 1)
        if c.is_mfma and pv & c.R: n = max(n, 2)
        if p.is_trans and (c.is_valu or c.is_mfma) and pv & c.R: n = max(n, 1)
        if ps:
            if c.is_valu and ps & c.R: n = max(n, 4 if c.is_rdlane or c.mn.startswith("v_writelane") else 2)
            if c.is_vmem and ps & c.R: n = max(n, 5)
        if ("exec", 0) in p.W:
            if c.is_dpp: n = max(n, 5)
            if c.is_rdlane or c.is_perml or c.is_mfma: n = max(n, 4)
    if p.is_mfma:
        passes = 4 if "16x16x32" in p.mn else 8
        dist = {4: 8, 8: 12}[passes]
        if c.is_mfma:
            if pv & c.srcAB: n = max(n, dist)
            if pv & c.srcC and not (c.srcC == p.W and c.mn == p.mn): n = max(n, dist - 2)
            if pv & c.W and not (c.W == p.W): n = max(n, dist)
        elif c.is_valu or c.is_vmem or c.is_ds:
            if pv & (c.R | c.W): n = max(n, dist)
        if c.is_valu and p.srcC & c.W: n = max(n, {4: 3, 8: 7}[passes])
    if p.stdata and (c.W & p.stdata):
        n = max(n, 2 if c.is_valu else 1)
    if p.is_salu and ("m0", 0) in p.W and ("m0", 0) in c.R: n = max(n, 1)
    return n

class Asm:
    def __init__(self):
        self.out = []
        self.hist = []
        self.vm = []
        self.nops_added = 0
    def raw(self, text):
        self.out.append(text)
    def label(self, name, flush=True):
        self.out.append(name + ":")
        if flush:
            pass
    def comment(self, t): self.out.append("    ; " + t)
    def __call__(self, text, tag=None, count=True):
        ins = Ins(text)
        dist = 0; req = 0
        for p in reversed(self.hist):
            r = need(p, ins) - dist
            req = max(req, r)
            dist += p.states
            if dist > 24: break
        while req > 0:
            k = min(req, 16)
            nop = Ins("s_nop %d" % (k - 1))
            self.out.append("    s_nop %d" % (k - 1)); self.hist.append(nop); self.nops_added += k
            req -= k
        self.out.append("    " + text)
        self.hist.append(ins)
        if len(self.hist) > 64: self.hist = self.hist[-40:]
        if ins.is_vmem and count:
            self.vm.append(tag)
        return ins
    def wait_vm(self, tag, extra=""):
        idx = max(i for i, t in enumerate(self.vm) if t == tag)
        n = len(self.vm) - 1 - idx
        assert n <= 63
        self("s_waitcnt vmcnt(%d)%s" % (n, extra))
        self.vm = self.vm[idx + 1:]
    def wait_vm0(self):
        self("s_waitcnt vmcnt(0)"); self.vm = []
    def fence(self, n=8):
        self("s_nop %d" % (n - 1))
    def text(self): return "\n".join(self.out) + "\n"
```

```python
import sys, struct
from emit import Asm

NAME = "recurrent_scan__gqa_block_cached__glu_gated_geglu__decode"

def f2u(x): return struct.unpack("<I", struct.pack("<f", x))[0]

class Cfg:
    kv_flags = "nt"
    w_flags = ""
    w2_flags = "nt"
    inter = True
    d0 = 8
    spin_max = 1 << 17
    stamps = False

SREC = 0x0
P3OFF = 0x10000
P4OFF = 0x100000
L_QP, L_FP, L_ML, L_OP, L_SP, L_END = 0, 512, 1024, 2048, 18432, 26624

def gen(cfg):
    A = Asm()
    sX, sK, sV, sWQ, sWO, sWG, sWU, sWD, sOUT, sDBG, sWS = 4, 6, 8, 10, 12, 16, 18, 20, 22, 24, 26
    def sp(r): return "s[%d:%d]" % (r, r + 1)
    def v4(r): return "v[%d:%d]" % (r, r + 3)
    def v2(r): return "v[%d:%d]" % (r, r + 1)
    sW, sG, sSP, sKO, sVO = 3, 36, 37, 38, 39
    sT0, sT1, sT2, sT3 = 40, 41, 42, 43
    sHI, sC, sSCL, sREC, sCNT, sSAN = 44, 45, 46, 47, 48, 49
    sJ, sCB, sHH = 50, 51, 52
    vLANE, vKO, vL16, vM0, vM1 = 1, 2, 3, 4, 5
    vMK = 6
    vA0, vA1 = 14, 15
    vQ = 16
    vS = 32
    vACC = 64
    vX = 72
    vT = 82
    vVI = 88
    vKS = 128
    NVI = 10
    def kslot(i): return vKS + 4 * i
    def vslot(m): return vVI + 4 * m if m < NVI else kslot(m - NVI)
    vWO0, vWO1, vWD = kslot(22), kslot(23), kslot(24)
    vML = kslot(25)
    vH = kslot(25) + 2
    vXF = kslot(25) + 3
    vP = kslot(26)
    vPY = kslot(27)
    vD = kslot(28)
    vB = kslot(29)
    vB2 = kslot(30)
    vWT = kslot(31)

    def rnd(v, t):
        A("v_cvt_pk_bf16_f32 v%d, v%d, v%d" % (t, v, v))
        A("v_lshlrev_b32 v%d, 16, v%d" % (v, t))
    def dpp(op, v, n):
        A("%s_dpp v%d, v%d, v%d row_ror:%d row_mask:0xf bank_mask:0xf" % (op, v, v, v, n))
    def xrows(op, v, t):
        A("v_mov_b32 v%d, v%d" % (t, v))
        A("v_permlane16_swap_b32 v%d, v%d" % (t, v))
        A("%s v%d, v%d, v%d" % (op, v, t, v))
        A("v_mov_b32 v%d, v%d" % (t, v))
        A("v_permlane32_swap_b32 v%d, v%d" % (t, v))
        A("%s v%d, v%d, v%d" % (op, v, t, v))
    def allred(op, v, t, rors=(8, 4, 2, 1)):
        for n in rors: dpp(op, v, n)
        xrows(op, v, t)
    def unpack(dst_lo, dst_hi, src):
        A("v_lshlrev_b32 v%d, 16, v%d" % (dst_lo, src))
        A("v_and_b32 v%d, s%d, v%d" % (dst_hi, sHI, src))
    def exec_all(): A("s_mov_b64 exec, -1")
    stamp_n = [0]
    def stamp():
        if not cfg.stamps: return
        k = stamp_n[0]; stamp_n[0] += 1
        A("s_memrealtime s[%d:%d]" % (60 + 2 * k, 61 + 2 * k))

    A("s_cmp_ge_u32 s2, 256")
    A("s_cbranch_scc1 L_end")
    A("s_load_dwordx16 s[4:19], s[0:1], 0")
    A("s_load_dwordx8 s[20:27], s[0:1], 64")
    stamp()
    A("v_and_b32 v%d, 63, v0" % vLANE)
    A("v_lshrrev_b32 v%d, 6, v0" % vA0)
    A("v_lshlrev_b32 v%d, 4, v%d" % (vL16, vLANE))
    A("v_readfirstlane_b32 s%d, v%d" % (sW, vA0))
    A("v_and_b32 v%d, 3, v%d" % (vA1, vLANE))
    A("v_lshlrev_b32 v%d, 10, v%d" % (vKO, vA1))
    A("v_bfe_u32 v%d, v%d, 2, 2" % (vA1, vLANE))
    A("v_lshl_add_u32 v%d, v%d, 8, v%d" % (vKO, vA1, vKO))
    A("v_lshrrev_b32 v%d, 4, v%d" % (vA1, vLANE))
    A("v_lshl_add_u32 v%d, v%d, 4, v%d" % (vKO, vA1, vKO))
    A("s_and_b32 s%d, s2, 7" % sG)
    A("s_lshr_b32 s%d, s2, 3" % sSP)
    A("s_lshl_b32 s%d, s%d, 23" % (sKO, sG))
    A("s_lshl_b32 s%d, s%d, 18" % (sT0, sSP))
    A("s_add_u32 s%d, s%d, s%d" % (sKO, sKO, sT0))
    if cfg.inter:
        A("s_lshl_b32 s%d, s%d, 12" % (sT0, sW)); step = 32768
    else:
        A("s_lshl_b32 s%d, s%d, 15" % (sT0, sW)); step = 4096
    A("s_add_u32 s%d, s%d, s%d" % (sKO, sKO, sT0))
    A("s_mov_b32 s%d, s%d" % (sVO, sKO))
    A("s_mov_b32 s%d, 0xffff0000" % sHI)
    A("s_mov_b32 s%d, 0x%08x" % (sC, f2u(1.4426950408889634)))
    A("s_mov_b32 s%d, 0x%08x" % (sSCL, f2u(128 ** -0.5)))
    A("s_mov_b32 s%d, 0xfffffffe" % sSAN)
    A("s_lshl_b32 s%d, s%d, 5" % (sREC, sG))
    A("s_add_u32 s%d, s%d, s%d" % (sREC, sREC, sSP))
    A("s_lshl_b32 s%d, s%d, 7" % (sREC, sREC))
    A("s_lshr_b32 s%d, s%d, 2" % (sJ, sSP))
    A("s_and_b32 s%d, s%d, 3" % (sCB, sSP))
    A("s_lshl_b32 s%d, s%d, 3" % (sHH, sG))
    A("s_add_u32 s%d, s%d, s%d" % (sHH, sHH, sJ))
    A("v_lshrrev_b32 v20, 1, v%d" % vLANE)
    A("s_lshl_b32 s%d, s%d, 6" % (sT0, sW))
    A("v_add_u32 v20, s%d, v20" % sT0)
    A("v_lshlrev_b32 v21, 1, v20")
    A("v_lshlrev_b32 v22, 13, v20")
    A("v_and_b32 v23, 1, v%d" % vLANE)
    A("v_lshl_add_u32 v22, v23, 4, v22")
    A("s_lshl_b32 s%d, s%d, 10" % (sT1, sG))
    A("s_lshl_b32 s%d, s%d, 5" % (sT2, sSP))
    A("s_add_u32 s%d, s%d, s%d" % (sT1, sT1, sT2))
    A("v_add_u32 v22, s%d, v22" % sT1)
    A("v_add_u32 v23, 0x40000, v22")
    A("v_lshlrev_b32 v24, 1, v0")
    A("s_movk_i32 s%d, 3584" % sT1)
    A("v_mul_lo_u32 v25, v0, s%d" % sT1)
    A("s_min_u32 s%d, s%d, 27" % (sT2, sSP))
    A("s_lshl_b32 s%d, s%d, 4" % (sT2, sT2))
    A("s_mul_i32 s%d, s%d, 448" % (sT3, sG))
    A("s_add_u32 s%d, s%d, s%d" % (sT2, sT2, sT3))
    A("v_add_u32 v25, s%d, v25" % sT2)
    A("v_lshrrev_b32 v26, 1, v%d" % vLANE)
    A("v_lshlrev_b32 v26, 10, v26")
    A("v_and_b32 v27, 1, v%d" % vLANE)
    A("v_lshl_add_u32 v26, v27, 4, v26")
    A("s_lshl_b32 s%d, s%d, 16" % (sT0, sG))
    A("s_lshl_b32 s%d, s%d, 5" % (sT1, sSP))
    A("s_add_u32 s%d, s%d, s%d" % (sT0, sT0, sT1))
    A("s_add_u32 s%d, s%d, 0x%x" % (sT0, sT0, P3OFF))
    A("v_add_u32 v%d, s%d, v26" % (vA0, sT0))
    A("v_bfe_u32 v26, v%d, 3, 1" % vLANE)
    A("v_lshlrev_b32 v26, 17, v26")
    A("v_lshrrev_b32 v27, 4, v%d" % vLANE)
    A("v_lshl_add_u32 v26, v27, 13, v26")
    A("v_and_b32 v27, 7, v%d" % vLANE)
    A("v_lshl_add_u32 v26, v27, 10, v26")
    A("s_lshl_b32 s%d, s%d, 15" % (sT0, sCB))
    A("s_lshl_b32 s%d, s%d, 4" % (sT1, sHH))
    A("s_add_u32 s%d, s%d, s%d" % (sT0, sT0, sT1))
    A("s_add_u32 s%d, s%d, 0x%x" % (sT0, sT0, P4OFF))
    A("v_add_u32 v%d, s%d, v26" % (vA1, sT0))
    A("v_mov_b32 v28, -1"); A("v_mov_b32 v29, -1"); A("v_mov_b32 v30, -1"); A("v_mov_b32 v31, -1")
    A("v_add_u32 v26, 0x8000, v%d" % vA0)
    A("v_add_u32 v27, s%d, v%d" % (sREC, vL16))
    A("s_waitcnt lgkmcnt(0)")
    A("s_mov_b32 s28, s%d" % sK); A("s_mov_b32 s29, s%d" % (sK + 1)); A("s_mov_b32 s30, 0x4000000"); A("s_mov_b32 s31, 0x20000")
    A("s_mov_b32 s32, s%d" % sV); A("s_mov_b32 s33, s%d" % (sV + 1)); A("s_mov_b32 s34, 0x4000000"); A("s_mov_b32 s35, 0x20000")
    A("s_cmp_lg_u32 s%d, 0" % sW)
    A("s_cbranch_scc1 L_noclear")
    A("global_store_dwordx4 v%d, v[28:31], %s sc1" % (vA0, sp(sWS)), count=False)
    A("global_store_dwordx4 v26, v[28:31], %s sc1" % sp(sWS), count=False)
    A("global_store_dwordx4 v%d, v[28:31], %s sc1" % (vA1, sp(sWS)), count=False)
    A("s_mov_b64 exec, 0xff")
    A("global_store_dwordx4 v27, v[28:31], %s sc1" % sp(sWS), count=False)
    exec_all()
    A.label("L_noclear")
    wf = cfg.w_flags
    A("global_load_dwordx4 v[16:19], v%d, %s" % (vL16, sp(sX)), tag="x")
    A("global_load_ushort v32, v21, %s" % sp(sX), tag="x")
    A("global_load_ushort v33, v21, %s offset:64" % sp(sX), tag="x")
    A("global_load_ushort v34, v24, %s" % sp(sX), tag="x")
    A("global_load_dwordx4 v[36:39], v22, %s %s" % (sp(sWQ), wf), tag="wq")
    A("global_load_dwordx4 v[40:43], v23, %s %s" % (sp(sWQ), wf), tag="wq")
    A("global_load_dwordx4 v[44:47], v25, %s %s" % (sp(sWG), wf), tag="wf")
    A("global_load_dwordx4 v[48:51], v25, %s %s" % (sp(sWU), wf), tag="wf")
    bulk = [("K", i) for i in range(32)] + [("V", m) for m in range(32)]
    state = {"i": 0}
    def issue_bulk(n=1):
        for _ in range(n):
            kind, i = bulk[state["i"]]; state["i"] += 1
            if kind == "K":
                if i and i % 4 == 0: A("s_add_u32 s%d, s%d, %d" % (sKO, sKO, step))
                A("buffer_load_dwordx4 %s, v%d, s[28:31], s%d offen offset:%d %s" % (v4(kslot(i)), vKO, sKO, (i % 4) * 64, cfg.kv_flags), tag="K%d" % i)
            else:
                if i and i % 4 == 0: A("s_add_u32 s%d, s%d, %d" % (sVO, sVO, step))
                A("buffer_load_dwordx4 %s, v%d, s[32:35], s%d offen offset:%d %s" % (v4(vslot(i)), vL16, sVO, (i % 4) * 1024, cfg.kv_flags), tag="V%d" % i)
    issue_bulk(cfg.d0)
    stamp()
    A("v_bfe_u32 v26, v%d, 2, 2" % vLANE)
    A("v_and_b32 v27, 1, v26")
    A("v_lshlrev_b32 v27, 4, v27")
    A("v_mov_b32 v28, 0xffff")
    A("v_lshlrev_b32 v27, v27, v28")
    A("v_cmp_gt_u32 vcc, 2, v26")
    A("v_cndmask_b32 v%d, 0, v27, vcc" % vM0)
    A("v_cndmask_b32 v%d, v27, 0, vcc" % vM1)
    A("v_and_b32 v26, 1, v%d" % vLANE)
    A("v_lshlrev_b32 v26, 4, v26")
    A("v_lshlrev_b32 v27, v26, v28")
    A("v_bfe_u32 v26, v%d, 1, 3" % vLANE)
    for k in range(8):
        A("v_cmp_eq_u32 vcc, %d, v26" % k)
        A("v_cndmask_b32 v%d, 0, v27, vcc" % (vMK + k))
    for k in (0, 1, 4, 5, 8, 9):
        A("v_mov_b32 v%d, 0" % (vX + k))
    A.wait_vm("x")
    for k in range(4): unpack(20 + 2 * k, 21 + 2 * k, 16 + k)
    A("v_add_f32 v28, v20, v21"); A("v_add_f32 v29, v22, v23"); A("v_add_f32 v30, v24, v25"); A("v_add_f32 v31, v26, v27")
    A("v_add_f32 v28, v28, v29"); A("v_add_f32 v30, v30, v31"); A("v_add_f32 v28, v28, v30")
    allred("v_add_f32", 28, 29)
    A("v_mul_f32 v28, 0x3b000000, v28")
    for k in range(8): A("v_sub_f32 v%d, v%d, v28" % (20 + k, 20 + k))
    A("v_mul_f32 v30, v20, v20"); A("v_mul_f32 v31, v21, v21")
    for k in range(2, 8, 2):
        A("v_fmac_f32 v30, v%d, v%d" % (20 + k, 20 + k)); A("v_fmac_f32 v31, v%d, v%d" % (21 + k, 21 + k))
    A("v_add_f32 v30, v30, v31")
    allred("v_add_f32", 30, 29)
    A("v_mul_f32 v30, 0x3b000000, v30")
    rnd(28, 29)
    rnd(30, 29)
    A("v_add_f32 v30, 0x%08x, v30" % f2u(1e-5))
    rnd(30, 29)
    A("v_sqrt_f32 v30, v30")
    rnd(30, 29)
    A("v_rcp_f32 v31, v30")
    for r in (32, 33, 34):
        A("v_lshlrev_b32 v%d, 16, v%d" % (r, r))
        A("v_sub_f32 v%d, v%d, v28" % (r, r))
        rnd(r, 29)
        A("v_mul_f32 v26, v%d, v31" % r)
        A("v_fma_f32 v27, -v26, v30, v%d" % r)
        A("v_fma_f32 v%d, v27, v31, v26" % r)
        rnd(r, 29)
    A.wait_vm("wq")
    for k in range(4):
        unpack(16 + 2 * k, 17 + 2 * k, 36 + k)
        unpack(24 + 2 * k, 25 + 2 * k, 40 + k)
    for k in range(8): A("v_mul_f32 v%d, v%d, v32" % (16 + k, 16 + k))
    for k in range(8): A("v_fmac_f32 v%d, v%d, v33" % (16 + k, 24 + k))
    for i in range(4): A("v_permlane32_swap_b32 v%d, v%d" % (16 + i, 20 + i))
    for i in range(4): A("v_add_f32 v%d, v%d, v%d" % (16 + i, 16 + i, 20 + i))
    for i in range(2): A("v_permlane16_swap_b32 v%d, v%d" % (16 + i, 18 + i))
    for i in range(2): A("v_add_f32 v%d, v%d, v%d" % (16 + i, 16 + i, 18 + i))
    for n in (8, 4, 2):
        dpp("v_add_f32", 16, n); dpp("v_add_f32", 17, n)
    A("v_and_b32 v18, 1, v%d" % vLANE)
    A("v_lshlrev_b32 v18, 8, v18")
    A("v_lshrrev_b32 v19, 4, v%d" % vLANE)
    A("v_lshl_add_u32 v18, v19, 6, v18")
    A("s_lshl_b32 s%d, s%d, 3" % (sT0, sW))
    A("v_add_u32 v18, s%d, v18" % sT0)
    A("s_mov_b32 exec_lo, 0x00030003"); A("s_mov_b32 exec_hi, 0x00030003")
    A("ds_write_b64 v18, v[16:17] offset:%d" % L_QP)
    exec_all()
    A.wait_vm("wf")
    A("s_cmp_lg_u32 s%d, 0" % sW)
    A("s_cbranch_scc1 L_noflag")
    A("v_mov_b32 v16, s2"); A("v_mov_b32 v17, 1")
    A("s_mov_b64 exec, 1")
    A("global_store_byte v16, v17, %s sc1" % sp(sDBG), count=False)
    exec_all()
    A.label("L_noflag")
    for k in range(4):
        unpack(16 + 2 * k, 17 + 2 * k, 44 + k)
        unpack(24 + 2 * k, 25 + 2 * k, 48 + k)
    for k in range(16): A("v_mul_f32 v%d, v%d, v34" % (16 + k, 16 + k))
    for i in range(8): A("v_permlane32_swap_b32 v%d, v%d" % (16 + i, 24 + i))
    for i in range(8): A("v_add_f32 v%d, v%d, v%d" % (16 + i, 16 + i, 24 + i))
    for i in range(4): A("v_permlane16_swap_b32 v%d, v%d" % (16 + i, 20 + i))
    for i in range(4): A("v_add_f32 v%d, v%d, v%d" % (16 + i, 16 + i, 20 + i))
    for n in (8, 4, 2, 1):
        for i in range(4): dpp("v_add_f32", 16 + i, n)
    A("v_lshrrev_b32 v20, 4, v%d" % vLANE)
    A("v_lshlrev_b32 v20, 7, v20")
    A("s_lshl_b32 s%d, s%d, 2" % (sT0, sW))
    A("v_add_u32 v20, s%d, v20" % sT0)
    A("s_mov_b32 exec_lo, 0x00010001"); A("s_mov_b32 exec_hi, 0x00010001")
    for i in range(4): A("ds_write_b32 v20, v%d offset:%d" % (16 + i, L_FP + i * 32))
    exec_all()
    A("s_waitcnt lgkmcnt(0)")
    A("s_barrier")
    stamp()
    A("s_cmp_eq_u32 s%d, 0" % sW)
    A("s_cbranch_scc1 L_finq")
    A("s_cmp_eq_u32 s%d, 1" % sW)
    A("s_cbranch_scc1 L_finf")
    A("s_branch L_fin_done")
    A.label("L_finq")
    A("s_mov_b64 exec, 0xff")
    A("v_lshlrev_b32 v32, 6, v%d" % vLANE)
    for k in range(4): A("ds_read_b128 %s, v32 offset:%d" % (v4(16 + 4 * k), L_QP + 16 * k))
    A("v_lshlrev_b32 v33, 2, v%d" % vLANE)
    A("v_add_u32 v33, s%d, v33" % sREC)
    A("s_waitcnt lgkmcnt(0)")
    for k in range(2, 16, 2):
        A("v_add_f32 v16, v16, v%d" % (16 + k)); A("v_add_f32 v17, v17, v%d" % (17 + k))
    A("v_cvt_pk_bf16_f32 v16, v16, v17")
    A("v_min_u32 v16, s%d, v16" % sSAN)
    A("global_store_dword v33, v16, %s sc1" % sp(sWS), count=False)
    exec_all()
    A("s_branch L_fin_done")
    A.label("L_finf")
    A("s_cmp_ge_u32 s%d, 28" % sSP)
    A("s_cbranch_scc1 L_fin_done")
    A("s_mov_b64 exec, 0xff")
    A("v_lshlrev_b32 v32, 5, v%d" % vLANE)
    A("ds_read_b128 v[16:19], v32 offset:%d" % (L_FP))
    A("ds_read_b128 v[20:23], v32 offset:%d" % (L_FP + 16))
    A("ds_read_b128 v[24:27], v32 offset:%d" % (L_FP + 256))
    A("ds_read_b128 v[28:31], v32 offset:%d" % (L_FP + 272))
    A("v_lshlrev_b32 v33, 2, v%d" % vLANE)
    A("v_add_u32 v33, s%d, v33" % sREC)
    A("s_waitcnt lgkmcnt(0)")
    for k in range(1, 8):
        A("v_add_f32 v16, v16, v%d" % (16 + k)); A("v_add_f32 v24, v24, v%d" % (24 + k))
    rnd(16, 17); rnd(24, 17)
    c1 = -2.0 * 1.4426950408889634 * 0.7978845608028654
    c2 = c1 * 0.044715
    A("v_mul_f32 v18, v16, v16")
    A("v_mov_b32 v19, 0x%08x" % f2u(c1))
    A("v_fmac_f32 v19, 0x%08x, v18" % f2u(c2))
    A("v_mul_f32 v19, v19, v16")
    A("v_exp_f32 v19, v19")
    A("v_add_f32 v19, 1.0, v19")
    A("v_rcp_f32 v19, v19")
    A("v_mul_f32 v16, v16, v19")
    rnd(16, 17)
    A("v_mul_f32 v16, v16, v24")
    A("v_cvt_pk_bf16_f32 v16, v16, v16")
    A("v_min_u32 v16, s%d, v16" % sSAN)
    A("global_store_dword v33, v16, %s offset:32 sc1" % sp(sWS), count=False)
    exec_all()
    A.label("L_fin_done")
    A.fence(4)
    issue_bulk(24 - cfg.d0)
    A("v_lshlrev_b32 v%d, 2, v%d" % (vT, vLANE))
    A("global_load_dword v%d, v%d, %s sc1" % (vT + 1, vT, sp(sDBG)), tag="flags")
    A("v_and_b32 v%d, 3, v%d" % (vT + 2, vLANE))
    A("v_lshlrev_b32 v%d, 10, v%d" % (vT + 2, vT + 2))
    A("v_lshrrev_b32 v%d, 5, v%d" % (vT + 3, vLANE))
    A("v_lshl_add_u32 v%d, v%d, 7, v%d" % (vT + 2, vT + 3, vT + 2))
    A("v_bfe_u32 v%d, v%d, 4, 1" % (vT + 3, vLANE))
    A("v_lshl_add_u32 v%d, v%d, 4, v%d" % (vT + 2, vT + 3, vT + 2))
    A("s_lshl_b32 s%d, s%d, 12" % (sT0, sG))
    A("v_add_u32 v%d, s%d, v%d" % (vT + 2, sT0, vT + 2))
    issue_bulk(8)
    A.wait_vm("flags")
    A("s_mov_b32 s%d, 0" % sCNT)
    A("s_mov_b32 s%d, 0x01010101" % sT0)
    A.label("L_flagchk")
    A("v_cmp_ne_u32 vcc, s%d, v%d" % (sT0, vT + 1))
    A("s_cbranch_vccz L_flagok")
    A("s_add_u32 s%d, s%d, 1" % (sCNT, sCNT))
    A("s_cmp_gt_u32 s%d, %d" % (sCNT, cfg.spin_max))
    A("s_cbranch_scc1 L_flagok")
    A("s_sleep 2")
    A("global_load_dword v%d, v%d, %s sc1" % (vT + 1, vT, sp(sDBG)), count=False)
    A("s_waitcnt vmcnt(0)")
    A("s_branch L_flagchk")
    A.label("L_flagok")
    for j in range(4):
        A("global_load_dwordx4 %s, v%d, %s offset:%d sc1" % (v4(vQ + 4 * j), vT + 2, sp(sWS), j * 256), tag="q")
    issue_bulk(NVI)
    A.wait_vm("q")
    def anysent(regs, t):
        regs = list(regs)
        A("v_max3_u32 v%d, v%d, v%d, v%d" % (t, regs[0], regs[1], regs[2] if len(regs) > 2 else regs[1]))
        rest = regs[3:]
        while rest:
            a = rest[0]; b = rest[1] if len(rest) > 1 else rest[0]
            A("v_max3_u32 v%d, v%d, v%d, v%d" % (t, t, a, b))
            rest = rest[2:]
        A("v_cmp_eq_u32 vcc, -1, v%d" % t)
    A("s_mov_b32 s%d, 0" % sCNT)
    A.label("L_qchk")
    anysent(range(vQ, vQ + 16), vT + 3)
    A("s_cbranch_vccz L_qok")
    A("s_add_u32 s%d, s%d, 1" % (sCNT, sCNT))
    A("s_cmp_gt_u32 s%d, %d" % (sCNT, cfg.spin_max))
    A("s_cbranch_scc1 L_qok")
    A("s_sleep 2")
    for j in range(4):
        A("global_load_dwordx4 %s, v%d, %s offset:%d sc1" % (v4(vQ + 4 * j), vT + 2, sp(sWS), j * 256), count=False)
    A("s_waitcnt vmcnt(0)")
    A("s_branch L_qchk")
    A.label("L_qok")
    stamp()
    A("s_lshr_b32 s%d, s%d, 1" % (sT0, sHH))
    A("s_lshl_b32 s%d, s%d, 7" % (sT0, sT0))
    A("s_lshr_b32 s%d, s%d, 1" % (sT1, sW))
    A("s_lshl_b32 s%d, s%d, 5" % (sT1, sT1))
    A("s_add_u32 s%d, s%d, s%d" % (sT0, sT0, sT1))
    A("s_and_b32 s%d, s%d, 1" % (sT1, sHH))
    A("s_lshl_b32 s%d, s%d, 2" % (sT1, sT1))
    A("s_add_u32 s%d, s%d, s%d" % (sT0, sT0, sT1))
    A("s_and_b32 s%d, s%d, 1" % (sT1, sW))
    A("s_lshl_b32 s%d, s%d, 1" % (sT1, sT1))
    A("s_add_u32 s%d, s%d, s%d" % (sT0, sT0, sT1))
    A("s_lshl_b32 s%d, s%d, 10" % (sT0, sT0))
    A("s_lshl_b32 s%d, s%d, 8" % (sT1, sCB))
    A("s_add_u32 s%d, s%d, s%d" % (sT0, sT0, sT1))
    A("v_lshrrev_b32 v%d, 4, v%d" % (vT + 4, vLANE))
    A("v_and_b32 v%d, 15, v%d" % (vT + 5, vLANE))
    A("v_lshlrev_b32 v%d, 4, v%d" % (vT + 5, vT + 5))
    A("v_lshl_add_u32 v%d, v%d, 13, v%d" % (vT, vT + 4, vT + 5))
    A("v_add_u32 v%d, s%d, v%d" % (vT, sT0, vT))
    A("s_mul_i32 s%d, s%d, 28" % (sT0, sHH))
    A("s_min_u32 s%d, s%d, 6" % (sT2, sW))
    A("s_lshl_b32 s%d, s%d, 2" % (sT2, sT2))
    A("s_add_u32 s%d, s%d, s%d" % (sT0, sT0, sT2))
    A("s_lshl_b32 s%d, s%d, 10" % (sT0, sT0))
    A("s_add_u32 s%d, s%d, s%d" % (sT0, sT0, sT1))
    A("v_lshl_add_u32 v%d, v%d, 10, v%d" % (vT + 1, vT + 4, vT + 5))
    A("v_add_u32 v%d, s%d, v%d" % (vT + 1, sT0, vT + 1))
    A("s_mul_i32 s%d, s%d, 28" % (sT0, sJ))
    A("s_add_u32 s%d, s%d, s%d" % (sT0, sT0, sT2))
    A("v_add_u32 v%d, s%d, v%d" % (vT + 4, sT0, vT + 4))
    A("v_lshrrev_b32 v%d, 3, v%d" % (vT + 5, vT + 4))
    A("v_lshlrev_b32 v%d, 7, v%d" % (vT + 5, vT + 5))
    A("v_and_b32 v%d, 7, v%d" % (vT + 4, vT + 4))
    A("v_lshl_add_u32 v%d, v%d, 2, v%d" % (vT + 2, vT + 4, vT + 5))
    A("s_lshl_b32 s%d, s%d, 12" % (sT0, sG))
    A("v_add_u32 v%d, s%d, v%d" % (vT + 2, sT0, vT + 2))
    w2 = cfg.w2_flags
    for t in range(8):
        for j in range(4):
            A("v_mfma_f32_16x16x32_bf16 %s, %s, %s, %s" % (v4(vS + 4 * t), v4(kslot(4 * t + j)), v4(vQ + 4 * j), "0" if j == 0 else v4(vS + 4 * t)))
        if t < 5: issue_bulk(4)
        elif t == 5:
            issue_bulk(2)
            A("global_load_dwordx4 %s, v%d, %s %s" % (v4(vWO0), vT, sp(sWO), w2), tag="wo")
            A("global_load_dwordx4 %s, v%d, %s offset:1024 %s" % (v4(vWO1), vT, sp(sWO), w2), tag="wo")
        elif t == 6:
            A("global_load_dwordx4 %s, v%d, %s %s" % (v4(vWD), vT + 1, sp(sWD), w2), tag="wd")
            A("global_load_dword v%d, v%d, %s offset:32 sc1" % (vH, vT + 2, sp(sWS)), tag="h")
    assert state["i"] == 64
    A("v_mov_b32 v%d, v%d" % (vWT + 3, vT + 2))
    for i in range(16):
        a, b = vS + 2 * i, vS + 2 * i + 1
        t = vT + (i & 1)
        A("v_cvt_pk_bf16_f32 v%d, v%d, v%d" % (t, a, b))
        unpack(a, b, t)
        A("v_mul_f32 v%d, s%d, v%d" % (a, sSCL, a)); A("v_mul_f32 v%d, s%d, v%d" % (b, sSCL, b))
        A("v_cvt_pk_bf16_f32 v%d, v%d, v%d" % (t, a, b))
        unpack(a, b, t)
    vMx, vNm, vL, vTm = vT, vT + 1, vT + 2, vT + 3
    A("v_max3_f32 v%d, v%d, v%d, v%d" % (vMx, vS, vS + 1, vS + 2))
    A("v_max3_f32 v%d, v%d, v%d, v%d" % (vTm, vS + 3, vS + 4, vS + 5))
    for k in range(6, 32, 4):
        A("v_max3_f32 v%d, v%d, v%d, v%d" % (vMx, vMx, vS + k, vS + k + 1))
        if k + 3 < 32: A("v_max3_f32 v%d, v%d, v%d, v%d" % (vTm, vTm, vS + k + 2, vS + k + 3))
    A("v_max_f32 v%d, v%d, v%d" % (vMx, vMx, vTm))
    xrows("v_max_f32", vMx, vTm)
    A("v_mul_f32 v%d, s%d, v%d" % (vNm, sC, vMx))
    for k in range(32):
        A("v_fma_f32 v%d, v%d, s%d, -v%d" % (vS + k, vS + k, sC, vNm))
    for k in range(32):
        A("v_exp_f32 v%d, v%d" % (vS + k, vS + k))
    A("v_add_f32 v%d, v%d, v%d" % (vL, vS, vS + 1))
    A("v_add_f32 v%d, v%d, v%d" % (vTm, vS + 2, vS + 3))
    for k in range(4, 32, 2):
        A("v_add_f32 v%d, v%d, v%d" % (vL, vL, vS + k)); A("v_add_f32 v%d, v%d, v%d" % (vTm, vTm, vS + k + 1))
    A("v_add_f32 v%d, v%d, v%d" % (vL, vL, vTm))
    xrows("v_add_f32", vL, vTm)
    A("v_mov_b32 v%d, v%d" % (vT + 4, vMx)); A("v_mov_b32 v%d, v%d" % (vT + 5, vL))
    A("v_and_b32 v%d, 3, v%d" % (vTm, vLANE))
    A("v_lshlrev_b32 v%d, 6, v%d" % (vTm, vTm))
    A("s_lshl_b32 s%d, s%d, 3" % (sT0, sW))
    A("v_add_u32 v%d, s%d, v%d" % (vNm, sT0, vTm))
    A("s_mov_b64 exec, 0xf")
    A("ds_write_b64 v%d, %s offset:%d" % (vNm, v2(vT + 4), L_ML))
    exec_all()
    A("s_waitcnt lgkmcnt(0)")
    A("s_barrier")
    for k in range(4): A("ds_read_b128 %s, v%d offset:%d" % (v4(vQ + 4 * k), vTm, L_ML + 16 * k))
    A("s_waitcnt lgkmcnt(0)")
    vMg = vT + 4
    A("v_max3_f32 v%d, v%d, v%d, v%d" % (vMg, vQ, vQ + 2, vQ + 4))
    A("v_max3_f32 v%d, v%d, v%d, v%d" % (vMg, vMg, vQ + 6, vQ + 8))
    A("v_max3_f32 v%d, v%d, v%d, v%d" % (vMg, vMg, vQ + 10, vQ + 12))
    A("v_max_f32 v%d, v%d, v%d" % (vMg, vMg, vQ + 14))
    for k in range(8):
        A("v_sub_f32 v%d, v%d, v%d" % (vQ + 2 * k, vQ + 2 * k, vMg))
    A("v_sub_f32 v%d, v%d, v%d" % (vMx, vMx, vMg))
    for k in range(8):
        A("v_mul_f32 v%d, s%d, v%d" % (vQ + 2 * k, sC, vQ + 2 * k))
    A("v_mul_f32 v%d, s%d, v%d" % (vMx, sC, vMx))
    for k in range(8):
        A("v_exp_f32 v%d, v%d" % (vQ + 2 * k, vQ + 2 * k))
    A("v_exp_f32 v%d, v%d" % (vMx, vMx))
    A("v_mul_f32 v%d, v%d, v%d" % (vT + 5, vQ, vQ + 1))
    for k in range(1, 8):
        A("v_fmac_f32 v%d, v%d, v%d" % (vT + 5, vQ + 2 * k, vQ + 2 * k + 1))
    for k in range(32):
        A("v_mul_f32 v%d, v%d, v%d" % (vS + k, vS + k, vMx))
    A("s_cmp_lg_u32 s%d, 0" % sW)
    A("s_cbranch_scc1 L_noml")
    A("v_min_u32 v%d, s%d, v%d" % (vT + 4, sSAN, vT + 4)); A("v_min_u32 v%d, s%d, v%d" % (vT + 5, sSAN, vT + 5))
    A("v_lshlrev_b32 v%d, 3, v%d" % (vTm, vLANE))
    A("v_add_u32 v%d, s%d, v%d" % (vTm, sREC, vTm))
    A("s_mov_b64 exec, 0xf")
    A("global_store_dwordx2 v%d, %s, %s offset:64 sc1" % (vTm, v2(vT + 4), sp(sWS)), count=False)
    exec_all()
    A.label("L_noml")
    stamp()
    A("v_lshrrev_b32 v%d, 1, v%d" % (vT, vLANE))
    A("v_lshlrev_b32 v%d, 7, v%d" % (vT, vT))
    A("s_lshl_b32 s%d, s%d, 12" % (sT0, sG))
    A("s_lshr_b32 s%d, s%d, 1" % (sT1, sJ))
    A("s_lshl_b32 s%d, s%d, 3" % (sT1, sT1))
    A("s_add_u32 s%d, s%d, s%d" % (sT0, sT0, sT1))
    A("v_add_u32 v%d, s%d, v%d" % (vT, sT0, vT))
    A("s_lshl_b32 s%d, s%d, 3" % (sT0, sHH))
    A("s_add_u32 s%d, s%d, s%d" % (sT0, sT0, sW))
    A("s_lshl_b32 s%d, s%d, 10" % (sT0, sT0))
    A("s_add_u32 s%d, s%d, 0x%x" % (sT0, sT0, P3OFF))
    A("v_add_u32 v%d, s%d, v%d" % (vT + 1, sT0, vL16))
    A("v_and_b32 v%d, 3, v%d" % (vT + 2, vLANE))
    A("v_lshlrev_b32 v%d, 9, v%d" % (vT + 2, vT + 2))
    A("v_lshrrev_b32 v%d, 4, v%d" % (vT + 3, vLANE))
    A("v_lshl_add_u32 v%d, v%d, 6, v%d" % (vT + 2, vT + 3, vT + 2))
    A("v_bfe_u32 v%d, v%d, 2, 2" % (vT + 3, vLANE))
    A("v_lshl_add_u32 v%d, v%d, 4, v%d" % (vT + 2, vT + 3, vT + 2))
    A("s_lshl_b32 s%d, s%d, 11" % (sT0, sW))
    A("v_add_u32 v%d, s%d, v%d" % (vT + 2, sT0, vT + 2))
    A("s_and_b32 s%d, s2, 127" % sT0)
    A("s_lshr_b32 s%d, s%d, 3" % (sT1, sT0))
    A("s_lshl_b32 s%d, s%d, 5" % (sT1, sT1))
    A("s_and_b32 s%d, s%d, 7" % (sT0, sT0))
    A("s_add_u32 s%d, s%d, s%d" % (sT0, sT0, sT1))
    A("v_lshrrev_b32 v%d, 4, v%d" % (vT + 3, vLANE))
    A("v_lshlrev_b32 v%d, 3, v%d" % (vT + 3, vT + 3))
    A("v_add_u32 v%d, s%d, v%d" % (vT + 3, sT0, vT + 3))
    A("v_lshlrev_b32 v%d, 1, v%d" % (vT + 3, vT + 3))
    def prepx(m):
        x = vX + 4 * (m & 1)
        A("v_cvt_pk_bf16_f32 v%d, v%d, v%d" % (vT + 4, vS + m, vS + m))
        A("v_and_b32 v%d, v%d, v%d" % (x + 2, vT + 4, vM0))
        A("v_and_b32 v%d, v%d, v%d" % (x + 3, vT + 4, vM1))
    prepx(0)
    for m in range(32):
        x = vX + 4 * (m & 1)
        if m == 24:
            A("global_load_dwordx2 %s, v%d, %s offset:64 sc1" % (v2(vML), vT, sp(sWS)), tag="ml")
            A("global_load_ushort v%d, v%d, %s" % (vXF, vT + 3, sp(sX)), tag="xf")
        A.wait_vm("V%d" % m)
        A("v_mfma_f32_16x16x32_bf16 %s, %s, %s, %s" % (v4(vACC), v4(vslot(m)), v4(x + 2), "0" if m == 0 else v4(vACC)))
        A("v_mfma_f32_16x16x32_bf16 %s, %s, %s, %s" % (v4(vACC + 4), v4(vslot(m)), v4(x), "0" if m == 0 else v4(vACC + 4)))
        if m < 31: prepx(m + 1)
    stamp()
    A("ds_write_b128 v%d, %s offset:%d" % (vT + 2, v4(vACC), L_OP))
    A("ds_write_b128 v%d, %s offset:%d" % (vT + 2, v4(vACC + 4), L_OP + 256))
    A("s_waitcnt lgkmcnt(0)")
    A("s_barrier")
    A("s_cmp_gt_u32 s%d, 1" % sW)
    A("s_cbranch_scc1 L_nop3")
    A("s_lshl_b32 s%d, s%d, 10" % (sT0, sW))
    A("v_add_u32 v%d, s%d, v%d" % (vT + 2, sT0, vL16))
    for k in range(8): A("ds_read_b128 %s, v%d offset:%d" % (v4(vS + 4 * k), vT + 2, L_OP + 2048 * k))
    A("s_lshl_b32 s%d, s%d, 15" % (sT0, sW))
    A("v_add_u32 v%d, s%d, v%d" % (vA0, sT0, vA0))
    for k in range(1, 8):
        A("s_waitcnt lgkmcnt(%d)" % (7 - k))
        for c in range(4): A("v_add_f32 v%d, v%d, v%d" % (vS + c, vS + c, vS + 4 * k + c))
    for c in range(4): A("v_min_u32 v%d, s%d, v%d" % (vS + c, sSAN, vS + c))
    A("global_store_dwordx4 v%d, %s, %s sc1" % (vA0, v4(vS), sp(sWS)), count=False)
    A.label("L_nop3")
    A.fence(2)
    stamp()
    A("global_load_dwordx4 %s, v%d, %s sc1" % (v4(vP), vT + 1, sp(sWS)), tag="p3")
    A.wait_vm("xf")
    A("s_mov_b32 s%d, 0" % sCNT)
    A.label("L_mlchk")
    anysent([vML, vML + 1, vH], vT + 4)
    A("s_cbranch_vccz L_mlok")
    A("s_add_u32 s%d, s%d, 1" % (sCNT, sCNT))
    A("s_cmp_gt_u32 s%d, %d" % (sCNT, cfg.spin_max))
    A("s_cbranch_scc1 L_mlok")
    A("s_sleep 1")
    A("global_load_dwordx2 %s, v%d, %s offset:64 sc1" % (v2(vML), vT, sp(sWS)), count=False)
    A("global_load_dword v%d, v%d, %s offset:32 sc1" % (vH, vWT + 3, sp(sWS)), count=False)
    A("s_waitcnt vmcnt(0)")
    A("s_branch L_mlchk")
    A.label("L_mlok")
    A("s_cmp_lt_u32 s%d, 7" % sW)
    A("s_cselect_b32 s%d, -1, 0" % sT0)
    A("v_and_b32 v%d, s%d, v%d" % (vH, sT0, vH))
    for k in range(4): A("v_and_b32 v%d, v%d, v%d" % (vB + k, vH, vMK + 4 + k))
    A("v_mfma_f32_16x16x32_bf16 %s, %s, %s, 0" % (v4(vD), v4(vWD), v4(vB)))
    A("v_mov_b32 v%d, v%d" % (vWT, vML))
    allred("v_max_f32", vWT, vWT + 1, rors=(8, 4, 2))
    A("v_sub_f32 v%d, v%d, v%d" % (vWT, vML, vWT))
    A("v_mul_f32 v%d, s%d, v%d" % (vWT, sC, vWT))
    A("v_exp_f32 v%d, v%d" % (vWT, vWT))
    A("v_mul_f32 v%d, v%d, v%d" % (vWT + 2, vWT, vML + 1))
    allred("v_add_f32", vWT + 2, vWT + 1, rors=(8, 4, 2))
    A("v_rcp_f32 v%d, v%d" % (vWT + 2, vWT + 2))
    A("v_mul_f32 v%d, v%d, v%d" % (vWT, vWT, vWT + 2))
    A.wait_vm("p3")
    A("s_mov_b32 s%d, 0" % sCNT)
    A.label("L_p3chk")
    anysent(range(vP, vP + 4), vT + 4)
    A("s_cbranch_vccz L_p3ok")
    A("s_add_u32 s%d, s%d, 1" % (sCNT, sCNT))
    A("s_cmp_gt_u32 s%d, %d" % (sCNT, cfg.spin_max))
    A("s_cbranch_scc1 L_p3ok")
    A("global_load_dwordx4 %s, v%d, %s sc1" % (v4(vP), vT + 1, sp(sWS)), count=False)
    A("s_waitcnt vmcnt(0)")
    A("s_branch L_p3chk")
    A.label("L_p3ok")
    stamp()
    for c in range(4): A("v_mul_f32 v%d, v%d, v%d" % (vP + c, vP + c, vWT))
    def rs4(p, rors):
        A("v_permlane32_swap_b32 v%d, v%d" % (p, p + 2))
        A("v_permlane32_swap_b32 v%d, v%d" % (p + 1, p + 3))
        A("v_add_f32 v%d, v%d, v%d" % (p, p, p + 2))
        A("v_add_f32 v%d, v%d, v%d" % (p + 1, p + 1, p + 3))
        A("v_permlane16_swap_b32 v%d, v%d" % (p, p + 1))
        A("v_add_f32 v%d, v%d, v%d" % (p, p, p + 1))
        for n in rors: dpp("v_add_f32", p, n)
    rs4(vP, (8, 4, 2))
    A("v_cvt_pk_bf16_f32 v%d, v%d, v%d" % (vP, vP, vP))
    for k in range(4):
        A("v_and_b32_dpp v%d, v%d, v%d quad_perm:[0,0,2,2] row_mask:0xf bank_mask:0xf" % (vB + k, vP, vMK + k))
    for k in range(4):
        A("v_and_b32_dpp v%d, v%d, v%d quad_perm:[1,1,3,3] row_mask:0xf bank_mask:0xf" % (vB2 + k, vP, vMK + k))
    A("v_mfma_f32_16x16x32_bf16 %s, %s, %s, %s" % (v4(vD), v4(vWO0), v4(vB), v4(vD)))
    A("v_mfma_f32_16x16x32_bf16 %s, %s, %s, %s" % (v4(vD), v4(vWO1), v4(vB2), v4(vD)))
    A("s_lshl_b32 s%d, s%d, 10" % (sT0, sW))
    A("v_add_u32 v%d, s%d, v%d" % (vT + 2, sT0, vL16))
    A("ds_write_b128 v%d, %s offset:%d" % (vT + 2, v4(vD), L_SP))
    A("s_waitcnt lgkmcnt(0)")
    A("s_barrier")
    A("s_cmp_lg_u32 s%d, 0" % sW)
    A("s_cbranch_scc1 L_end")
    for k in range(8): A("ds_read_b128 %s, v%d offset:%d" % (v4(vS + 4 * k), vL16, L_SP + 1024 * k))
    for k in range(1, 8):
        A("s_waitcnt lgkmcnt(%d)" % (7 - k))
        for c in range(4): A("v_add_f32 v%d, v%d, v%d" % (vS + c, vS + c, vS + 4 * k + c))
    for c in range(4): A("v_min_u32 v%d, s%d, v%d" % (vS + c, sSAN, vS + c))
    A("global_store_dwordx4 v%d, %s, %s sc1" % (vA1, v4(vS), sp(sWS)), count=False)
    stamp()
    A("s_cmp_ge_u32 s2, 128")
    A("s_cbranch_scc1 L_end2")
    A("s_lshl_b32 s%d, s2, 10" % sT0)
    A("s_add_u32 s%d, s%d, 0x%x" % (sT0, sT0, P4OFF))
    A("v_add_u32 v%d, s%d, v%d" % (vT, sT0, vL16))
    A("v_add_u32 v%d, 0x20000, v%d" % (vT + 1, vT))
    A("s_mov_b32 s%d, 0" % sCNT)
    A.label("L_p4poll")
    A("global_load_dwordx4 %s, v%d, %s sc1" % (v4(vP), vT, sp(sWS)), count=False)
    A("global_load_dwordx4 %s, v%d, %s sc1" % (v4(vPY), vT + 1, sp(sWS)), count=False)
    A("s_waitcnt vmcnt(0)")
    anysent(range(vP, vP + 8), vT + 4)
    A("s_cbranch_vccz L_p4ok")
    A("s_add_u32 s%d, s%d, 1" % (sCNT, sCNT))
    A("s_cmp_gt_u32 s%d, %d" % (sCNT, cfg.spin_max))
    A("s_cbranch_scc0 L_p4poll")
    A.label("L_p4ok")
    stamp()
    p, y = vP, vPY
    for r in (p, y):
        A("v_permlane32_swap_b32 v%d, v%d" % (r, r + 2))
        A("v_permlane32_swap_b32 v%d, v%d" % (r + 1, r + 3))
    for r in (p, y):
        A("v_add_f32 v%d, v%d, v%d" % (r, r, r + 2))
        A("v_add_f32 v%d, v%d, v%d" % (r + 1, r + 1, r + 3))
    for r in (p, y): A("v_permlane16_swap_b32 v%d, v%d" % (r, r + 1))
    for r in (p, y): A("v_add_f32 v%d, v%d, v%d" % (r, r, r + 1))
    for n in (8, 4, 2, 1):
        for r in (p, y): dpp("v_add_f32", r, n)
    rnd(y, y + 1); rnd(p, p + 1)
    A("v_mul_f32 v%d, s%d, v%d" % (y + 2, sC, y))
    A("v_exp_f32 v%d, -v%d" % (y + 2, y + 2))
    A("v_add_f32 v%d, 1.0, v%d" % (y + 2, y + 2))
    A("v_rcp_f32 v%d, v%d" % (y + 2, y + 2))
    A("v_mul_f32 v%d, v%d, v%d" % (y, y, y + 2))
    rnd(y, y + 1)
    A("v_mul_f32 v%d, v%d, v%d" % (p, p, y))
    rnd(p, p + 1)
    A("v_lshlrev_b32 v%d, 16, v%d" % (vXF, vXF))
    A("v_add_f32 v%d, v%d, v%d" % (p, p, vXF))
    A("v_cvt_pk_bf16_f32 v%d, v%d, v%d" % (p, p, p))
    A("s_mov_b32 exec_lo, 0x00010001"); A("s_mov_b32 exec_hi, 0x00010001")
    A("global_store_short v%d, v%d, %s" % (vT + 3, p, sp(sOUT)), count=False)
    A.label("L_end2")
    if cfg.stamps:
        stamp()
        exec_all()
        A("s_waitcnt lgkmcnt(0)")
        n = stamp_n[0]
        A("s_lshl_b32 s%d, s2, 8" % sT0)
        A("s_add_u32 s%d, s%d, 0x200000" % (sT0, sT0))
        A("v_mov_b32 v%d, s%d" % (vT, sT0))
        A("s_mov_b64 exec, 1")
        for k in range(n):
            A("v_mov_b32 v%d, s%d" % (vT + 4, 60 + 2 * k)); A("v_mov_b32 v%d, s%d" % (vT + 5, 61 + 2 * k))
            A("global_store_dwordx2 v%d, %s, %s offset:%d" % (vT, v2(vT + 4), sp(sWS), 8 * k), count=False)
            A("s_nop 1")
    A.label("L_end")
    return A

HEADER = open("cdna_kernels/%s.s.ref" % NAME).read().split("; Override launch geometry")[0]

def build(cfg, path):
    A = gen(cfg)
    s = HEADER
    s += "; @launch grid=(256,1,1) block=(512,1,1) lds=%d\n" % L_END
    s += '.amdgcn_target "amdgcn-amd-amdhsa--gfx950"\n.text\n.globl %s_kernel\n.p2align 8\n.type %s_kernel,@function\n%s_kernel:\n' % (NAME, NAME, NAME)
    s += A.text()
    s += "s_endpgm\n"
    s += """.section .rodata,"a"
.p2align 6
.amdhsa_kernel %s_kernel
  .amdhsa_next_free_vgpr 256
  .amdhsa_next_free_sgpr 102
  .amdhsa_accum_offset 256
  .amdhsa_group_segment_fixed_size 0
  .amdhsa_kernarg_size 96
  .amdhsa_user_sgpr_count 2
  .amdhsa_user_sgpr_kernarg_segment_ptr 1
  .amdhsa_system_sgpr_workgroup_id_x 1
.end_amdhsa_kernel
""" % NAME
    open(path, "w").write(s)
    return A

if __name__ == "__main__":
    cfg = Cfg()
    out = "cdna_kernels/%s.s" % NAME
    for a in sys.argv[1:]:
        k, v = a.split("=", 1)
        if k == "out": out = v; continue
        cur = getattr(cfg, k)
        setattr(cfg, k, type(cur)(int(v)) if isinstance(cur, (bool, int)) else v)
    A = build(cfg, out)
    print("wrote", out, "lines", len(A.out), "auto nops", A.nops_added)
```

```python
import re

TRANS = ("v_exp_f32", "v_log_f32", "v_rcp_f32", "v_rsq_f32", "v_sqrt_f32", "v_sin_f32", "v_cos_f32")

def regs_of(op):
    op = op.strip()
    if op.startswith("-"): op = op[1:]
    m = re.fullmatch(r"abs\((.*)\)", op)
    if m: op = m.group(1)
    m = re.fullmatch(r"([vsa])(\d+)", op)
    if m: return {(m.group(1), int(m.group(2)))}
    m = re.fullmatch(r"([vsa])\[(\d+):(\d+)\]", op)
    if m: return {(m.group(1), i) for i in range(int(m.group(2)), int(m.group(3)) + 1)}
    if op in ("vcc", "vcc_lo", "vcc_hi"): return {("vcc", 0)}
    if op in ("exec", "exec_lo", "exec_hi"): return {("exec", 0)}
    if op == "m0": return {("m0", 0)}
    return set()

class Ins:
    def __init__(self, text):
        self.text = text
        t = text.split(";")[0].strip()
        parts = t.split(None, 1)
        self.mn = parts[0]
        rest = parts[1] if len(parts) > 1 else ""
        ops = []; cur = ""; depth = 0
        for ch in rest:
            if ch == "[": depth += 1
            if ch == "]": depth -= 1
            if ch == "," and depth == 0:
                ops.append(cur.strip()); cur = ""
            else: cur += ch
        if cur.strip(): ops.append(cur.strip())
        self.mods = ""
        if ops:
            sp = ops[-1].split(None, 1)
            ops[-1] = sp[0]
            if len(sp) > 1: self.mods = sp[1]
        self.ops = ops
        mn = self.mn
        self.is_mfma = mn.startswith("v_mfma")
        self.is_valu = mn.startswith("v_") and not self.is_mfma
        self.is_trans = any(mn.startswith(x) for x in TRANS)
        self.is_dpp = "_dpp" in mn
        self.is_perml = mn.startswith("v_permlane")
        self.is_rdlane = mn.startswith("v_readlane") or mn.startswith("v_readfirstlane")
        self.is_vmem = mn.startswith(("buffer_", "global_", "flat_"))
        self.is_ds = mn.startswith("ds_")
        self.is_store = self.is_vmem and ("store" in mn or "atomic" in mn)
        self.is_salu = mn.startswith("s_")
        W = set(); R = set(); self.srcC = set(); self.srcAB = set(); self.stdata = set()
        o = [regs_of(x) for x in ops]
        if self.is_mfma:
            W |= o[0]; R |= o[1] | o[2] | o[3]; self.srcC = o[3]; self.srcAB = o[1] | o[2]
        elif self.is_perml:
            W |= o[0] | o[1]; R |= o[0] | o[1]
        elif self.is_valu:
            W |= o[0]
            k = 1
            if mn.startswith(("v_add_co", "v_sub_co", "v_addc_co", "v_subb_co", "v_div_scale", "v_mad_u64")):
                W |= o[1]; k = 2
            for x in o[k:]: R |= x
            if mn.startswith(("v_fmac", "v_dot2c", "v_pk_fmac")) or self.is_dpp and "bound_ctrl" not in self.mods:
                R |= o[0]
            if mn.startswith("v_cndmask") and len(ops) == 3: R |= {("vcc", 0)}
            if mn.startswith("v_cmpx"): W |= {("exec", 0)}
        elif self.is_vmem:
            if self.is_store:
                for x in o: R |= x
                if mn.startswith("global_"): self.stdata = o[1]
                else: self.stdata = o[0]
                if "x4" not in mn and "x3" not in mn: self.stdata = set()
            elif "lds" in self.mods.split():
                for x in o: R |= x
                R |= {("m0", 0)}
            else:
                W |= o[0]
                for x in o[1:]: R |= x
        elif self.is_ds:
            if mn.startswith(("ds_read", "ds_bpermute", "ds_permute", "ds_swizzle")) or "_rtn" in mn:
                W |= o[0]
                for x in o[1:]: R |= x
            else:
                for x in o: R |= x
        elif self.is_salu:
            if mn.startswith(("s_cmp", "s_cbranch", "s_branch", "s_waitcnt", "s_nop", "s_barrier", "s_sleep", "s_endpgm", "s_setprio")):
                for x in o: R |= x
            else:
                if o: W |= o[0]
                for x in o[1:]: R |= x
        self.W = W; self.R = R
        self.states = 1
        if mn == "s_nop": self.states = int(ops[0], 0) + 1

def need(p, c):
    n = 0
    pv = {r for r in p.W if r[0] in "va"}
    ps = {r for r in p.W if r[0] in ("s", "vcc")}
    if p.is_valu:
        if c.is_dpp and pv & (c.R | c.W): n = max(n, 2)
        if c.is_perml and pv & c.R: n = max(n, 2)
        if c.is_rdlane and pv & c.R: n = max(n, 1)
        if c.is_mfma and pv & c.R: n = max(n, 2)
        if p.is_trans and (c.is_valu or c.is_mfma) and pv & c.R: n = max(n, 1)
        if ps:
            if c.is_valu and ps & c.R: n = max(n, 4 if c.is_rdlane or c.mn.startswith("v_writelane") else 2)
            if c.is_vmem and ps & c.R: n = max(n, 5)
        if ("exec", 0) in p.W:
            if c.is_dpp: n = max(n, 5)
            if c.is_rdlane or c.is_perml or c.is_mfma: n = max(n, 4)
    if p.is_mfma:
        passes = 4 if "16x16x32" in p.mn else 8
        dist = {4: 8, 8: 12}[passes]
        if c.is_mfma:
            if pv & c.srcAB: n = max(n, dist)
            if pv & c.srcC and not (c.srcC == p.W and c.mn == p.mn): n = max(n, dist - 2)
            if pv & c.W and not (c.W == p.W): n = max(n, dist)
        elif c.is_valu or c.is_vmem or c.is_ds:
            if pv & (c.R | c.W): n = max(n, dist)
        if c.is_valu and p.srcC & c.W: n = max(n, {4: 3, 8: 7}[passes])
    if p.stdata and (c.W & p.stdata):
        n = max(n, 2 if c.is_valu else 1)
    if p.is_salu and ("m0", 0) in p.W and ("m0", 0) in c.R: n = max(n, 1)
    return n

class Asm:
    def __init__(self):
        self.out = []
        self.hist = []
        self.vm = []
        self.nops_added = 0
    def raw(self, text):
        self.out.append(text)
    def label(self, name, flush=True):
        self.out.append(name + ":")
        if flush:
            pass
    def comment(self, t): self.out.append("    ; " + t)
    def __call__(self, text, tag=None, count=True):
        ins = Ins(text)
        dist = 0; req = 0
        for p in reversed(self.hist):
            r = need(p, ins) - dist
            req = max(req, r)
            dist += p.states
            if dist > 24: break
        while req > 0:
            k = min(req, 16)
            nop = Ins("s_nop %d" % (k - 1))
            self.out.append("    s_nop %d" % (k - 1)); self.hist.append(nop); self.nops_added += k
            req -= k
        self.out.append("    " + text)
        self.hist.append(ins)
        if len(self.hist) > 64: self.hist = self.hist[-40:]
        if ins.is_vmem and count:
            self.vm.append(tag)
        return ins
    def wait_vm(self, tag, extra=""):
        idx = max(i for i, t in enumerate(self.vm) if t == tag)
        n = len(self.vm) - 1 - idx
        assert n <= 63
        self("s_waitcnt vmcnt(%d)%s" % (n, extra))
        self.vm = self.vm[idx + 1:]
    def wait_if(self, tag):
        if tag in self.vm: self.wait_vm(tag)
    def wait_vm0(self):
        self("s_waitcnt vmcnt(0)"); self.vm = []
    def fence(self, n=8):
        self("s_nop %d" % (n - 1))
    def text(self): return "\n".join(self.out) + "\n"
```

```python
import sys, struct
from emit import Asm

NAME = "recurrent_scan__gqa_block_cached__glu_gated_geglu__decode"
def f2u(x): return struct.unpack("<I", struct.pack("<f", x))[0]

class Cfg:
    kv_flags = "nt"
    w_flags = "nt"
    w2_flags = "nt"
    D = 6
    DV = 6
    D1 = 10
    D0 = 16
    nvb = 6
    mlat = 14
    spin_max = 1 << 17
    stamps = False
    probe = -1
    probewg = -1

QPOFF = 0x0
FPOFF = 0x10000
MLOFF = 0x20000
P3OFF = 0x40000
P4OFF = 0x100000
L_FL, L_Q, L_ML, L_OP, L_SP, L_END = 0, 1024, 512, 2048, 18432, 26624
F_CLR, F_Q, F_CNT = L_FL, L_FL + 4, L_FL + 8

def gen(cfg):
    A = Asm()
    sX, sK, sV, sWQ, sWO, sWG, sWU, sWD, sOUT, sDBG, sWS = 4, 6, 8, 10, 12, 16, 18, 20, 22, 24, 26
    def sp(r): return "s[%d:%d]" % (r, r + 1)
    def v4(r): return "v[%d:%d]" % (r, r + 3)
    def v2(r): return "v[%d:%d]" % (r, r + 1)
    sW, sG, sSP, sKO, sVO = 3, 36, 37, 38, 39
    sT0, sT1, sT2, sT3 = 40, 41, 42, 43
    sHI, sC, sSCL, sCNT, sSAN = 44, 45, 46, 48, 49
    sJ, sCB, sHH, sSTR, sPUB, sQD = 50, 51, 47, 56, 57, 58
    vLANE, vKO, vL16, vHM, vZ = 1, 2, 3, 4, 5
    vMK = 6
    vA0, vA1 = 14, 15
    vQ = 16
    vR = 20
    vACC = 28
    vX = 36
    vT = 46
    vVI = 56
    vKS = 128
    NVI = 18
    def kslot(i): return vKS + 4 * i
    qk_order = [4 * k + a for a in range(4) for k in range(8)]
    def vslot(m): return vVI + 4 * m if m < NVI else kslot(qk_order[m - NVI])
    fr = [kslot(t) for t in qk_order[14:]]
    vWO0, vWO1, vWD, vML, vP, vPY, vD, vB, vB2, vWT, vF0, vF1 = fr[:12]
    vS = [fr[12], fr[13], fr[14], fr[15]]
    vH = vML + 2
    vXF = vML + 3

    def rnd(v, t):
        A("v_cvt_pk_bf16_f32 v%d, v%d, v%d" % (t, v, v))
        A("v_lshlrev_b32 v%d, 16, v%d" % (v, t))
    def dpp(op, v, n):
        A("%s_dpp v%d, v%d, v%d row_ror:%d row_mask:0xf bank_mask:0xf" % (op, v, v, v, n))
    def xrows(op, v, t):
        A("v_mov_b32 v%d, v%d" % (t, v))
        A("v_permlane16_swap_b32 v%d, v%d" % (t, v))
        A("%s v%d, v%d, v%d" % (op, v, t, v))
        A("v_mov_b32 v%d, v%d" % (t, v))
        A("v_permlane32_swap_b32 v%d, v%d" % (t, v))
        A("%s v%d, v%d, v%d" % (op, v, t, v))
    def allred(op, v, t, rors=(8, 4, 2, 1)):
        for n in rors: dpp(op, v, n)
        xrows(op, v, t)
    def unpack(dst_lo, dst_hi, src):
        A("v_lshlrev_b32 v%d, 16, v%d" % (dst_lo, src))
        A("v_and_b32 v%d, s%d, v%d" % (dst_hi, sHI, src))
    def exec_all(): A("s_mov_b64 exec, -1")
    NST = 20
    def stamp(k):
        if cfg.stamps: A("s_memrealtime s[%d:%d]" % (60 + 2 * k, 61 + 2 * k))
    def anysent(regs, t):
        regs = list(regs)
        A("v_max3_u32 v%d, v%d, v%d, v%d" % (t, regs[0], regs[1], regs[2] if len(regs) > 2 else regs[1]))
        rest = regs[3:]
        while rest:
            a = rest[0]; b = rest[1] if len(rest) > 1 else rest[0]
            A("v_max3_u32 v%d, v%d, v%d, v%d" % (t, t, a, b))
            rest = rest[2:]
        A("v_cmp_eq_u32 vcc, -1, v%d" % t)
    def spin_guard(lbl_ok):
        A("s_add_u32 s%d, s%d, 1" % (sCNT, sCNT))
        A("s_cmp_gt_u32 s%d, %d" % (sCNT, cfg.spin_max))
        A("s_cbranch_scc1 %s" % lbl_ok)
    def lds_wait(name, off, val, t):
        A("s_mov_b32 s%d, 0" % sCNT)
        A.label("L_%s" % name)
        A("ds_read_b32 v%d, v%d offset:%d" % (t, vZ, off))
        A("s_waitcnt lgkmcnt(0)")
        A("v_readfirstlane_b32 s%d, v%d" % (sT0, t))
        A("s_cmp_eq_u32 s%d, %d" % (sT0, val))
        A("s_cbranch_scc1 L_%s_ok" % name)
        A("s_add_u32 s%d, s%d, 1" % (sCNT, sCNT))
        A("s_cmp_gt_u32 s%d, %d" % (sCNT, cfg.spin_max * 16))
        A("s_cbranch_scc1 L_%s_ok" % name)
        A("s_sleep 1")
        A("s_branch L_%s" % name)
        A.label("L_%s_ok" % name)

    A("s_cmp_ge_u32 s2, 256")
    A("s_cbranch_scc1 L_end")
    A("s_load_dwordx16 s[4:19], s[0:1], 0")
    A("s_load_dwordx8 s[20:27], s[0:1], 64")
    if cfg.stamps:
        for k in range(1, NST): A("s_mov_b64 s[%d:%d], 0" % (60 + 2 * k, 61 + 2 * k))
    stamp(0)
    A("v_mov_b32 v%d, 0" % vZ)
    for k in range(10): A("v_mov_b32 v%d, 0" % (vX + k))
    A("v_and_b32 v%d, 63, v0" % vLANE)
    A("v_lshrrev_b32 v%d, 6, v0" % vA0)
    A("ds_write_b128 v%d, %s offset:%d" % (vZ, v4(vX), L_FL))
    A("v_lshlrev_b32 v%d, 4, v%d" % (vL16, vLANE))
    A("v_readfirstlane_b32 s%d, v%d" % (sW, vA0))
    A("v_bfe_u32 v%d, v%d, 2, 2" % (vA1, vLANE))
    A("v_lshlrev_b32 v%d, 8, v%d" % (vKO, vA1))
    A("v_lshrrev_b32 v%d, 4, v%d" % (vA1, vLANE))
    A("v_lshl_add_u32 v%d, v%d, 6, v%d" % (vKO, vA1, vKO))
    A("v_and_b32 v%d, 3, v%d" % (vA1, vLANE))
    A("v_lshl_add_u32 v%d, v%d, 4, v%d" % (vKO, vA1, vKO))
    A("s_and_b32 s%d, s2, 7" % sG)
    A("s_lshr_b32 s%d, s2, 3" % sSP)
    A("s_lshl_b32 s%d, s%d, 23" % (sKO, sG))
    A("s_lshl_b32 s%d, s%d, 18" % (sT0, sSP))
    A("s_add_u32 s%d, s%d, s%d" % (sKO, sKO, sT0))
    A("s_lshl_b32 s%d, s%d, 12" % (sT0, sW)); step = 32768
    A("s_add_u32 s%d, s%d, s%d" % (sKO, sKO, sT0))
    A("s_mov_b32 s%d, s%d" % (sVO, sKO))
    A("s_mov_b32 s30, 0x4000000"); A("s_mov_b32 s31, 0x20000")
    A("s_mov_b32 s34, 0x4000000"); A("s_mov_b32 s35, 0x20000")
    A("s_mov_b32 s%d, 0xffff0000" % sHI)
    A("s_mov_b32 s%d, 0xfffffffe" % sSAN)
    A("s_lshr_b32 s%d, s%d, 2" % (sJ, sSP))
    A("s_and_b32 s%d, s%d, 3" % (sCB, sSP))
    A("s_lshl_b32 s%d, s%d, 3" % (sHH, sG))
    A("s_add_u32 s%d, s%d, s%d" % (sHH, sHH, sJ))
    A("s_cmp_lt_u32 s%d, 3" % sW)
    A("s_cbranch_scc1 L_roles")
    def kload(i):
        if i and i % 4 == 0: A("s_add_u32 s%d, s%d, %d" % (sKO, sKO, step))
        A("buffer_load_dwordx4 %s, v%d, s[28:31], s%d offen offset:%d %s" % (v4(kslot(i)), vKO, sKO, (i % 4) * 1024, cfg.kv_flags), tag="K%d" % i)
    def kstream(D, first, barrier_after=None):
        for i in range(first, 32):
            if i - D >= first: A.wait_if("K%d" % (i - D))
            kload(i)
            if barrier_after is not None and i == barrier_after:
                A("s_barrier")
                stamp(2)
    def srds():
        A("s_waitcnt lgkmcnt(0)")
        A("s_mov_b32 s28, s%d" % sK); A("s_mov_b32 s29, s%d" % (sK + 1))
        A("s_mov_b32 s32, s%d" % sV); A("s_mov_b32 s33, s%d" % (sV + 1))
        stamp(1)
    srds()
    A.vm = []
    kstream(cfg.D, 0, barrier_after=min(cfg.D, 32) - 1)
    A("s_branch L_join")
    A.label("L_roles")
    A("s_cmp_eq_u32 s%d, 2" % sW)
    A("s_cbranch_scc0 L_gemv")
    def p3_pub_addr(dst, t0, t1):
        A("v_lshrrev_b32 v%d, 1, v%d" % (t0, vLANE))
        A("v_lshlrev_b32 v%d, 10, v%d" % (t0, t0))
        A("v_and_b32 v%d, 1, v%d" % (t1, vLANE))
        A("v_lshl_add_u32 v%d, v%d, 4, v%d" % (t0, t1, t0))
        A("s_lshl_b32 s%d, s%d, 16" % (sT0, sG))
        A("s_lshl_b32 s%d, s%d, 5" % (sT1, sSP))
        A("s_add_u32 s%d, s%d, s%d" % (sT0, sT0, sT1))
        A("s_add_u32 s%d, s%d, 0x%x" % (sT0, sT0, P3OFF))
        A("v_add_u32 v%d, s%d, v%d" % (dst, sT0, t0))
    def p4_pub_addr(dst, t0, t1):
        A("v_bfe_u32 v%d, v%d, 3, 1" % (t0, vLANE))
        A("v_lshlrev_b32 v%d, 17, v%d" % (t0, t0))
        A("v_lshrrev_b32 v%d, 4, v%d" % (t1, vLANE))
        A("v_lshl_add_u32 v%d, v%d, 13, v%d" % (t0, t1, t0))
        A("v_and_b32 v%d, 7, v%d" % (t1, vLANE))
        A("v_lshl_add_u32 v%d, v%d, 10, v%d" % (t0, t1, t0))
        A("s_lshl_b32 s%d, s%d, 15" % (sT0, sCB))
        A("s_lshl_b32 s%d, s%d, 4" % (sT1, sHH))
        A("s_add_u32 s%d, s%d, s%d" % (sT0, sT0, sT1))
        A("s_add_u32 s%d, s%d, 0x%x" % (sT0, sT0, P4OFF))
        A("v_add_u32 v%d, s%d, v%d" % (dst, sT0, t0))
    def ml_pub_addr(dst, h):
        A("s_lshl_b32 s%d, s%d, 10" % (sT0, sG))
        A("s_lshl_b32 s%d, s%d, 3" % (sT1, sSP))
        A("s_add_u32 s%d, s%d, s%d" % (sT0, sT0, sT1))
        A("s_add_u32 s%d, s%d, 0x%x" % (sT0, sT0, MLOFF))
        A("v_lshlrev_b32 v%d, 8, v%d" % (dst, h))
        A("v_add_u32 v%d, s%d, v%d" % (dst, sT0, dst))
    def qp_slot(dst):
        A("s_lshl_b32 s%d, s%d, 13" % (dst, sG))
        A("s_and_b32 s%d, s%d, 7" % (sT1, sSP))
        A("s_lshl_b32 s%d, s%d, 10" % (sT1, sT1))
        A("s_add_u32 s%d, s%d, s%d" % (dst, dst, sT1))
        A("s_lshr_b32 s%d, s%d, 3" % (sT1, sSP))
        A("s_lshl_b32 s%d, s%d, 8" % (sT1, sT1))
        A("s_add_u32 s%d, s%d, s%d" % (dst, dst, sT1))
    p3_pub_addr(60, 61, 62)
    A("v_add_u32 v61, 0x8000, v60")
    p4_pub_addr(62, 63, 64)
    A("v_and_b32 v64, 3, v%d" % vLANE)
    ml_pub_addr(63, 64)
    qp_slot(sT2)
    A("s_lshl_b32 s%d, s2, 8" % sT3)
    A("s_add_u32 s%d, s%d, 0x%x" % (sT3, sT3, FPOFF - 256))
    A("v_mov_b32 v64, s%d" % sT2)
    A("v_mov_b32 v65, s%d" % sT3)
    A("v_cmp_gt_u32 vcc, 16, v%d" % vLANE)
    A("v_cndmask_b32 v64, v65, v64, vcc")
    A("v_add_u32 v64, v64, v%d" % vL16)
    for k in range(4): A("v_mov_b32 v%d, -1" % (56 + k))
    A("v_mov_b32 v66, s2"); A("v_mov_b32 v67, 1")
    srds()
    A("s_mov_b32 exec_hi, 0")
    A("global_store_dwordx4 v64, v[56:59], %s sc1" % sp(sWS), count=False)
    A("s_mov_b64 exec, 0xf")
    A("global_store_dwordx2 v63, v[56:57], %s sc1" % sp(sWS), count=False)
    exec_all()
    A("global_store_dwordx4 v60, v[56:59], %s sc1" % sp(sWS), count=False)
    A("global_store_dwordx4 v61, v[56:59], %s sc1" % sp(sWS), count=False)
    A("global_store_dwordx4 v62, v[56:59], %s sc1" % sp(sWS), count=False)
    A("s_barrier")
    stamp(2)
    A("s_waitcnt vmcnt(0)")
    A("s_mov_b64 exec, 1")
    A("global_store_byte v66, v67, %s sc1" % sp(sDBG), count=False)
    A("ds_write_b32 v%d, v67 offset:%d" % (vZ, F_CLR))
    exec_all()
    stamp(3)
    A("s_branch L_klate")
    A.label("L_gemv")
    vW = vKS
    vXL, vXO, vSEL, vXP, vAa = 56, 60, 68, 76, 84
    vN = 96
    vDD = 92
    A("v_lshrrev_b32 v%d, 3, v%d" % (vT, vLANE))
    A("v_and_b32 v%d, 7, v%d" % (vT + 1, vLANE))
    A("s_mov_b32 s55, 0x20000")
    A("s_cmp_eq_u32 s%d, 0" % sW)
    A("s_cbranch_scc0 L_gemv_f")
    A("s_movk_i32 s%d, 0x2000" % sSTR)
    A("s_lshr_b32 s%d, s%d, 3" % (sQD, sSP))
    A("s_and_b32 s%d, s%d, 7" % (sT2, sSP))
    A("s_lshl_b32 s%d, s%d, 3" % (sT3, sG))
    A("s_add_u32 s%d, s%d, s%d" % (sT2, sT2, sT3))
    qp_slot(sPUB)
    A("s_mov_b32 s54, 0x400000")
    srds()
    A("s_mov_b32 s52, s%d" % sWQ); A("s_mov_b32 s53, s%d" % (sWQ + 1))
    A("s_branch L_gemv_go")
    A.label("L_gemv_f")
    A("s_movk_i32 s%d, 3584" % sSTR)
    A("s_and_b32 s%d, s2, 3" % sQD)
    A("s_lshr_b32 s%d, s2, 3" % sT2)
    A("s_lshl_b32 s%d, s2, 8" % sPUB)
    A("s_add_u32 s%d, s%d, 0x%x" % (sPUB, sPUB, FPOFF))
    A("s_mov_b32 s54, %d" % (512 * 3584))
    srds()
    A("s_bitcmp1_b32 s2, 2")
    A("s_cselect_b32 s52, s%d, s%d" % (sWU, sWG)); A("s_cselect_b32 s53, s%d, s%d" % (sWU + 1, sWG + 1))
    A("s_cmp_lt_u32 s2, 224")
    A("s_cbranch_scc1 L_gemv_go")
    A("s_barrier")
    A("s_branch L_klate")
    A.label("L_gemv_go")
    A.vm = []
    A("global_load_dwordx4 %s, v%d, %s" % (v4(vXL), vL16, sp(sX)), tag="x")
    A("s_lshl_b32 s%d, s%d, 8" % (sT0, sQD))
    A("v_lshlrev_b32 v%d, 5, v%d" % (vT + 2, vT))
    A("v_add_u32 v%d, s%d, v%d" % (vT + 2, sT0, vT + 2))
    A("global_load_dwordx4 %s, v%d, %s" % (v4(vXO), vT + 2, sp(sX)), tag="x")
    A("global_load_dwordx4 %s, v%d, %s offset:16" % (v4(vXO + 4), vT + 2, sp(sX)), tag="x")
    A("s_lshl_b32 s%d, s%d, 4" % (sT0, sSTR))
    A("v_mul_lo_u32 v%d, v%d, s%d" % (vT + 3, vT, sT0))
    A("v_lshl_add_u32 v%d, v%d, 4, v%d" % (vT + 3, vT + 1, vT + 3))
    A("s_lshl_b32 s%d, s%d, 7" % (sT0, sQD))
    A("s_mul_i32 s%d, s%d, s%d" % (sT0, sT0, sSTR))
    A("s_lshl_b32 s%d, s%d, 7" % (sT2, sT2))
    A("s_add_u32 s%d, s%d, s%d" % (sT0, sT0, sT2))
    for t in range(16):
        A("buffer_load_dwordx4 %s, v%d, s[52:55], s%d offen %s" % (v4(vW + 4 * t), vT + 3, sT0, cfg.w_flags), tag="W%d" % t)
        if t < 15: A("s_add_u32 s%d, s%d, s%d" % (sT0, sT0, sSTR))
    A("s_barrier")
    stamp(2)
    A("v_and_b32 v%d, 1, v%d" % (vT + 2, vT + 1))
    A("v_cmp_eq_u32 vcc, 1, v%d" % (vT + 2))
    A("v_mov_b32 v%d, 0x0c0c0100" % (vT + 4)); A("v_mov_b32 v%d, 0x01000c0c" % (vT + 5))
    A("v_cndmask_b32 v%d, v%d, v%d, vcc" % (vT + 4, vT + 4, vT + 5))
    A("v_mov_b32 v%d, 0x0c0c0302" % (vT + 6)); A("v_mov_b32 v%d, 0x03020c0c" % (vT + 5))
    A("v_cndmask_b32 v%d, v%d, v%d, vcc" % (vT + 5, vT + 6, vT + 5))
    A("v_mov_b32 v%d, 0x0c0c0c0c" % (vT + 6))
    A("v_lshrrev_b32 v%d, 1, v%d" % (vT + 2, vT + 1))
    for k in range(4):
        A("v_cmp_eq_u32 vcc, %d, v%d" % (k, vT + 2))
        A("v_cndmask_b32 v%d, v%d, v%d, vcc" % (vSEL + 2 * k, vT + 6, vT + 4))
        A("v_cndmask_b32 v%d, v%d, v%d, vcc" % (vSEL + 2 * k + 1, vT + 6, vT + 5))
    A("v_bfe_u32 v%d, v%d, 4, 1" % (vT + 2, vLANE))
    A("v_lshl_add_u32 v%d, v%d, 1, v%d" % (vT + 2, vT + 1, vT + 2))
    A("v_lshlrev_b32 v%d, 4, v%d" % (vT + 2, vT + 2))
    A("v_add_u32 v%d, s%d, v%d" % (vT + 7, sPUB, vT + 2))
    A.wait_vm("x")
    stamp(3)
    n = vN
    for k in range(4): unpack(n + 2 * k, n + 1 + 2 * k, vXL + k)
    m_, t_, v_, u_ = n + 8, n + 9, n + 10, n + 11
    A("v_add_f32 v%d, v%d, v%d" % (m_, n, n + 1)); A("v_add_f32 v%d, v%d, v%d" % (t_, n + 2, n + 3))
    A("v_add_f32 v%d, v%d, v%d" % (v_, n + 4, n + 5)); A("v_add_f32 v%d, v%d, v%d" % (u_, n + 6, n + 7))
    A("v_add_f32 v%d, v%d, v%d" % (m_, m_, t_)); A("v_add_f32 v%d, v%d, v%d" % (v_, v_, u_)); A("v_add_f32 v%d, v%d, v%d" % (m_, m_, v_))
    allred("v_add_f32", m_, t_)
    A("v_mul_f32 v%d, 0x3b000000, v%d" % (m_, m_))
    for k in range(8): A("v_sub_f32 v%d, v%d, v%d" % (n + k, n + k, m_))
    A("v_mul_f32 v%d, v%d, v%d" % (v_, n, n)); A("v_mul_f32 v%d, v%d, v%d" % (u_, n + 1, n + 1))
    for k in range(2, 8, 2):
        A("v_fmac_f32 v%d, v%d, v%d" % (v_, n + k, n + k)); A("v_fmac_f32 v%d, v%d, v%d" % (u_, n + k + 1, n + k + 1))
    A("v_add_f32 v%d, v%d, v%d" % (v_, v_, u_))
    allred("v_add_f32", v_, t_)
    A("v_mul_f32 v%d, 0x3b000000, v%d" % (v_, v_))
    rnd(m_, t_)
    rnd(v_, t_)
    A("v_add_f32 v%d, 0x%08x, v%d" % (v_, f2u(1e-5), v_))
    rnd(v_, t_)
    A("v_sqrt_f32 v%d, v%d" % (v_, v_))
    z = n + 12
    for k in range(8): unpack(z + 2 * k, z + 2 * k + 1, vXO + k)
    rnd(v_, t_)
    A("v_rcp_f32 v%d, v%d" % (u_, v_))
    for k in range(16): A("v_sub_f32 v%d, v%d, v%d" % (z + k, z + k, m_))
    for k in range(8): A("v_cvt_pk_bf16_f32 v%d, v%d, v%d" % (vXP + k, z + 2 * k, z + 2 * k + 1))
    for k in range(8): unpack(z + 2 * k, z + 2 * k + 1, vXP + k)
    for k in range(16):
        A("v_mul_f32 v%d, v%d, v%d" % (n + (k & 7), z + k, u_))
        A("v_fma_f32 v%d, -v%d, v%d, v%d" % (z + k, n + (k & 7), v_, z + k))
        A("v_fma_f32 v%d, v%d, v%d, v%d" % (z + k, z + k, u_, n + (k & 7)))
    for k in range(8): A("v_cvt_pk_bf16_f32 v%d, v%d, v%d" % (vXP + k, z + 2 * k, z + 2 * k + 1))
    stamp(4)
    def prepa(t):
        for k in range(4):
            A("v_perm_b32 v%d, v%d, v%d, v%d" % (vAa + 4 * (t & 1) + k, vXP + (t >> 1), vXP + (t >> 1), vSEL + 2 * k + (t & 1)))
    prepa(0)
    for t in range(16):
        if t < 15: prepa(t + 1)
        A.wait_vm("W%d" % t)
        A("v_mfma_f32_16x16x32_bf16 %s, %s, %s, %s" % (v4(vDD), v4(vAa + 4 * (t & 1)), v4(vW + 4 * t), "0" if t == 0 else v4(vDD)))
    stamp(5)
    lds_wait("clr", F_CLR, 1, vT + 2)
    for r in range(4): A("v_permlane32_swap_b32 v%d, v%d" % (vDD + r, n + r))
    for r in range(4):
        A("v_add_f32_dpp v%d, v%d, v%d row_ror:8 row_mask:0xf bank_mask:0xf" % (vDD + r, n + r, vDD + r))
    for r in range(4): A("v_min_u32 v%d, s%d, v%d" % (vDD + r, sSAN, vDD + r))
    A("s_mov_b64 exec, 0x00ff00ff")
    A("global_store_dwordx4 v%d, %s, %s sc1" % (vT + 7, v4(vDD), sp(sWS)), count=False)
    exec_all()
    stamp(6)
    A("s_cmp_eq_u32 s%d, 0" % sW)
    A("s_cbranch_scc0 L_klate")
    A("v_lshlrev_b32 v%d, 2, v%d" % (vT, vLANE))
    A("s_mov_b32 s%d, 0" % sCNT)
    A("s_mov_b32 s%d, 0x01010101" % sT0)
    A("v_lshrrev_b32 v%d, 4, v%d" % (vT + 2, vLANE))
    A("v_lshlrev_b32 v%d, 10, v%d" % (vT + 2, vT + 2))
    A("v_and_b32 v%d, 15, v%d" % (vT + 3, vLANE))
    A("v_lshl_add_u32 v%d, v%d, 4, v%d" % (vT + 2, vT + 3, vT + 2))
    A("s_lshl_b32 s%d, s%d, 13" % (sT1, sG))
    A("s_add_u32 s%d, s%d, 0x%x" % (sT1, sT1, QPOFF + 4096))
    A("v_add_u32 v%d, s%d, v%d" % (vT + 2, sT1, vT + 2))
    A.label("L_flagchk")
    A("global_load_dword v%d, v%d, %s sc1" % (vT + 1, vT, sp(sDBG)), count=False)
    A("s_waitcnt vmcnt(0)")
    A("v_cmp_ne_u32 vcc, s%d, v%d" % (sT0, vT + 1))
    A("s_cbranch_vccz L_flagok")
    spin_guard("L_flagok")
    A("s_branch L_flagchk")
    A.label("L_flagok")
    stamp(7)
    vG = 56
    A("s_mov_b32 s%d, 0" % sCNT)
    A.label("L_qchk")
    for u2 in range(2):
        for qd in range(4):
            A("global_load_dwordx4 %s, v%d, %s offset:%d sc1" % (v4(vG + 16 * u2 + 4 * qd), vT + 2, sp(sWS), u2 * 4096 + qd * 256 - 4096), count=False)
    A("s_waitcnt vmcnt(0)")
    anysent(range(vG, vG + 32), vT + 3)
    A("s_cbranch_vccz L_qok")
    spin_guard("L_qok")
    A("s_branch L_qchk")
    A.label("L_qok")
    for u2 in range(2):
        b = vG + 16 * u2
        for c in range(4):
            A("v_add_f32 v%d, v%d, v%d" % (b + c, b + c, b + 4 + c)); A("v_add_f32 v%d, v%d, v%d" % (b + 8 + c, b + 8 + c, b + 12 + c))
        for c in range(4): A("v_add_f32 v%d, v%d, v%d" % (b + c, b + c, b + 8 + c))
        A("v_cvt_pk_bf16_f32 v%d, v%d, v%d" % (b, b, b + 1)); A("v_cvt_pk_bf16_f32 v%d, v%d, v%d" % (b + 1, b + 2, b + 3))
    A("v_lshlrev_b32 v%d, 3, v%d" % (vT + 3, vLANE))
    A("v_mov_b32 v%d, 1" % (vT + 4))
    A("ds_write_b64 v%d, %s offset:%d" % (vT + 3, v2(vG), L_Q))
    A("ds_write_b64 v%d, %s offset:%d" % (vT + 3, v2(vG + 16), L_Q + 512))
    A("s_waitcnt lgkmcnt(0)")
    A("ds_write_b32 v%d, v%d offset:%d" % (vZ, vT + 4, F_Q))
    stamp(8)
    A.vm = []
    kstream(cfg.D0, 0)
    A("s_branch L_join")
    A.label("L_klate")
    A.vm = []
    kstream(cfg.D1, 0)
    A.label("L_join")
    A.vm = ["K%d" % i for i in range(32)]
    stamp(9)
    seq = ["K%d" % i for i in range(32)]
    vnext = [0]
    def vissue(n=1):
        for _ in range(n):
            m = vnext[0]
            if m >= 32: return
            vnext[0] += 1
            A.wait_if(seq[len(seq) - cfg.DV])
            if m and m % 4 == 0: A("s_add_u32 s%d, s%d, %d" % (sVO, sVO, step))
            A("buffer_load_dwordx4 %s, v%d, s[32:35], s%d offen offset:%d %s" % (v4(vslot(m)), vL16, sVO, (m % 4) * 1024, cfg.kv_flags), tag="V%d" % m)
            seq.append("V%d" % m)
    vissue(1)
    A("s_mov_b32 s%d, 0x%08x" % (sC, f2u(1.4426950408889634)))
    A("s_mov_b32 s%d, 0x%08x" % (sSCL, f2u(128 ** -0.5)))
    A("v_bfe_u32 v%d, v%d, 2, 1" % (vT, vLANE))
    A("v_lshlrev_b32 v%d, 4, v%d" % (vT, vT))
    A("v_mov_b32 v%d, 0xffff" % (vT + 1))
    A("v_lshlrev_b32 v%d, v%d, v%d" % (vHM, vT, vT + 1))
    A("v_and_b32 v%d, 1, v%d" % (vT, vLANE))
    A("v_lshlrev_b32 v%d, 4, v%d" % (vT, vT))
    A("v_lshlrev_b32 v%d, v%d, v%d" % (vT + 2, vT, vT + 1))
    A("v_bfe_u32 v%d, v%d, 1, 3" % (vT, vLANE))
    for k in range(8):
        A("v_cmp_eq_u32 vcc, %d, v%d" % (k, vT))
        A("v_cndmask_b32 v%d, 0, v%d, vcc" % (vMK + k, vT + 2))
    vissue(1)
    p3_pub_addr(vA0, vT, vT + 1)
    p4_pub_addr(vA1, vT, vT + 1)
    vissue(1)
    A("s_lshr_b32 s%d, s%d, 1" % (sT0, sHH))
    A("s_lshl_b32 s%d, s%d, 7" % (sT0, sT0))
    A("s_lshr_b32 s%d, s%d, 1" % (sT1, sW))
    A("s_lshl_b32 s%d, s%d, 5" % (sT1, sT1))
    A("s_add_u32 s%d, s%d, s%d" % (sT0, sT0, sT1))
    A("s_and_b32 s%d, s%d, 1" % (sT1, sHH))
    A("s_lshl_b32 s%d, s%d, 2" % (sT1, sT1))
    A("s_add_u32 s%d, s%d, s%d" % (sT0, sT0, sT1))
    A("s_and_b32 s%d, s%d, 1" % (sT1, sW))
    A("s_lshl_b32 s%d, s%d, 1" % (sT1, sT1))
    A("s_add_u32 s%d, s%d, s%d" % (sT0, sT0, sT1))
    A("s_lshl_b32 s%d, s%d, 10" % (sT0, sT0))
    A("s_lshl_b32 s%d, s%d, 8" % (sT1, sCB))
    A("s_add_u32 s%d, s%d, s%d" % (sT0, sT0, sT1))
    aWO, aWD, aH, aML, aP3, aLO, aXF, aQ = vT, vT + 1, vT + 2, vT + 3, vT + 4, vT + 5, vT + 6, vT + 7
    t8, t9 = vT + 8, vT + 9
    A("v_lshrrev_b32 v%d, 4, v%d" % (t8, vLANE))
    A("v_and_b32 v%d, 15, v%d" % (t9, vLANE))
    A("v_lshlrev_b32 v%d, 4, v%d" % (t9, t9))
    A("v_lshl_add_u32 v%d, v%d, 13, v%d" % (aWO, t8, t9))
    A("v_add_u32 v%d, s%d, v%d" % (aWO, sT0, aWO))
    A("s_mul_i32 s%d, s%d, 28" % (sT0, sHH))
    A("s_min_u32 s%d, s%d, 6" % (sT2, sW))
    A("s_lshl_b32 s%d, s%d, 2" % (sT2, sT2))
    A("s_add_u32 s%d, s%d, s%d" % (sT0, sT0, sT2))
    A("s_lshl_b32 s%d, s%d, 10" % (sT2, sT0))
    A("s_add_u32 s%d, s%d, s%d" % (sT2, sT2, sT1))
    A("v_lshl_add_u32 v%d, v%d, 10, v%d" % (aWD, t8, t9))
    A("v_add_u32 v%d, s%d, v%d" % (aWD, sT2, aWD))
    A("v_add_u32 v%d, s%d, v%d" % (t9, sT0, t8))
    A("v_lshrrev_b32 v%d, 6, v%d" % (aH, t9))
    A("v_lshlrev_b32 v%d, 11, v%d" % (aH, aH))
    A("v_and_b32 v%d, 63, v%d" % (t9, t9))
    A("v_lshl_add_u32 v%d, v%d, 2, v%d" % (aH, t9, aH))
    A("v_and_b32 v%d, 7, v%d" % (t9, vLANE))
    A("v_lshl_add_u32 v%d, v%d, 8, v%d" % (aH, t9, aH))
    A("v_add_u32 v%d, 0x%x, v%d" % (aH, FPOFF, aH))
    vissue(1)
    A("v_lshrrev_b32 v%d, 1, v%d" % (aML, vLANE))
    A("v_lshlrev_b32 v%d, 3, v%d" % (aML, aML))
    A("s_lshr_b32 s%d, s%d, 1" % (sT0, sHH))
    A("s_lshl_b32 s%d, s%d, 8" % (sT0, sT0))
    A("s_add_u32 s%d, s%d, 0x%x" % (sT0, sT0, MLOFF))
    A("v_add_u32 v%d, s%d, v%d" % (aML, sT0, aML))
    A("s_lshl_b32 s%d, s%d, 3" % (sT0, sHH))
    A("s_add_u32 s%d, s%d, s%d" % (sT0, sT0, sW))
    A("s_lshl_b32 s%d, s%d, 10" % (sT0, sT0))
    A("s_add_u32 s%d, s%d, 0x%x" % (sT0, sT0, P3OFF))
    A("v_add_u32 v%d, s%d, v%d" % (aP3, sT0, vL16))
    A("v_and_b32 v%d, 3, v%d" % (aLO, vLANE))
    A("v_lshlrev_b32 v%d, 9, v%d" % (aLO, aLO))
    A("v_lshl_add_u32 v%d, v%d, 6, v%d" % (aLO, t8, aLO))
    A("v_bfe_u32 v%d, v%d, 2, 2" % (t9, vLANE))
    A("v_lshl_add_u32 v%d, v%d, 4, v%d" % (aLO, t9, aLO))
    A("v_and_b32 v%d, 3, v%d" % (aQ, vLANE))
    A("v_lshlrev_b32 v%d, 8, v%d" % (aQ, aQ))
    A("v_lshl_add_u32 v%d, v%d, 6, v%d" % (aQ, t8, aQ))
    A("v_lshl_add_u32 v%d, v%d, 4, v%d" % (aQ, t9, aQ))
    A("s_lshl_b32 s%d, s%d, 11" % (sT0, sW))
    A("v_add_u32 v%d, s%d, v%d" % (aLO, sT0, aLO))
    A("s_and_b32 s%d, s2, 127" % sT0)
    A("s_lshr_b32 s%d, s%d, 3" % (sT1, sT0))
    A("s_lshl_b32 s%d, s%d, 5" % (sT1, sT1))
    A("s_and_b32 s%d, s%d, 7" % (sT0, sT0))
    A("s_add_u32 s%d, s%d, s%d" % (sT0, sT0, sT1))
    A("v_lshlrev_b32 v%d, 3, v%d" % (aXF, t8))
    A("v_add_u32 v%d, s%d, v%d" % (aXF, sT0, aXF))
    A("v_lshlrev_b32 v%d, 1, v%d" % (aXF, aXF))
    vissue(cfg.nvb - vnext[0])
    lds_wait("qw", F_Q, 1, t8)
    A("ds_read_b128 %s, v%d offset:%d" % (v4(vQ), aQ, L_Q))
    A.wait_if("K31")
    A("s_waitcnt lgkmcnt(0)")
    stamp(10)
    def qk(t): A("v_mfma_f32_16x16x32_bf16 %s, %s, %s, 0" % (v4(kslot(t)), v4(kslot(t)), v4(vQ)))
    def extr(a, r, k):
        d = kslot(4 * k + a) + r
        rot = (4 * (a - r)) % 16
        ctl = "row_ror:%d" % rot if rot else "quad_perm:[0,1,2,3]"
        if r == 0: A("v_mov_b32_dpp v%d, v%d %s row_mask:0xf bank_mask:0x%x" % (vR + k, d, ctl, 1 << a))
        else: A("v_add_f32_dpp v%d, v%d, v%d %s row_mask:0xf bank_mask:0x%x" % (vR + k, d, vR + k, ctl, 1 << a))
    for k in range(8): qk(4 * k)
    w2 = cfg.w2_flags
    for a in range(4):
        for r in range(4):
            for k in range(8):
                extr(a, r, k)
                if a < 3 and k % 4 == 3: qk(4 * (2 * r + k // 4) + a + 1)
            if r % 2 == 1: vissue(1)
    A("global_load_dwordx4 %s, v%d, %s %s" % (v4(vWO0), aWO, sp(sWO), w2), tag="wo"); seq.append("wo")
    for i in range(4):
        a, b = vR + 2 * i, vR + 2 * i + 1
        t = t8 + (i & 1)
        A("v_cvt_pk_bf16_f32 v%d, v%d, v%d" % (t, a, b))
        unpack(a, b, t)
        A("v_mul_f32 v%d, s%d, v%d" % (a, sSCL, a)); A("v_mul_f32 v%d, s%d, v%d" % (b, sSCL, b))
        A("v_cvt_pk_bf16_f32 v%d, v%d, v%d" % (t, a, b))
        unpack(a, b, t)
    A.wait_if(seq[len(seq) - cfg.DV])
    A("global_load_dwordx4 %s, v%d, %s offset:1024 %s" % (v4(vWO1), aWO, sp(sWO), w2), tag="wo1"); seq.append("wo1")
    vMx, vL, vTm, vNm = vS[0], vS[0] + 1, vS[0] + 2, vS[0] + 3
    A("v_max3_f32 v%d, v%d, v%d, v%d" % (vMx, vR, vR + 1, vR + 2))
    A("v_max3_f32 v%d, v%d, v%d, v%d" % (vTm, vR + 3, vR + 4, vR + 5))
    A("v_max3_f32 v%d, v%d, v%d, v%d" % (vMx, vMx, vR + 6, vR + 7))
    A("v_max_f32 v%d, v%d, v%d" % (vMx, vMx, vTm))
    allred("v_max_f32", vMx, vTm, rors=(8, 4))
    A("v_mul_f32 v%d, s%d, v%d" % (vNm, sC, vMx))
    for k in range(8): A("v_fma_f32 v%d, v%d, s%d, -v%d" % (vR + k, vR + k, sC, vNm))
    for k in range(8): A("v_exp_f32 v%d, v%d" % (vR + k, vR + k))
    A.wait_if(seq[len(seq) - cfg.DV])
    A("global_load_dwordx4 %s, v%d, %s %s" % (v4(vWD), aWD, sp(sWD), w2), tag="wd"); seq.append("wd")
    A("v_add_f32 v%d, v%d, v%d" % (vL, vR, vR + 1))
    A("v_add_f32 v%d, v%d, v%d" % (vTm, vR + 2, vR + 3))
    for k in range(4, 8, 2):
        A("v_add_f32 v%d, v%d, v%d" % (vL, vL, vR + k)); A("v_add_f32 v%d, v%d, v%d" % (vTm, vTm, vR + k + 1))
    A("v_add_f32 v%d, v%d, v%d" % (vL, vL, vTm))
    for k in range(8): A("v_cvt_pk_bf16_f32 v%d, v%d, v%d" % (vR + k, vR + k, vR + k))
    allred("v_add_f32", vL, vTm, rors=(8, 4))
    A("v_lshlrev_b32 v%d, 6, v%d" % (vTm, vLANE))
    A("s_lshl_b32 s%d, s%d, 3" % (sT0, sW))
    A("v_add_u32 v%d, s%d, v%d" % (vTm, sT0, vTm))
    A("v_mov_b32 v%d, 1" % vNm)
    A("s_mov_b64 exec, 0xf")
    A("ds_write_b64 v%d, %s offset:%d" % (vTm, v2(vMx), L_ML))
    A("s_mov_b64 exec, 1")
    A("ds_add_u32 v%d, v%d offset:%d" % (vZ, vNm, F_CNT))
    exec_all()
    stamp(11)
    vissue(1)
    A("s_cmp_gt_u32 s%d, 1" % sW)
    A("s_cbranch_scc1 L_noml")
    lds_wait("cnt", F_CNT, 8, vTm)
    A("v_lshrrev_b32 v%d, 5, v%d" % (vTm, vLANE))
    A("s_lshl_b32 s%d, s%d, 1" % (sT0, sW))
    A("v_add_u32 v%d, s%d, v%d" % (vTm, sT0, vTm))
    A("v_lshlrev_b32 v%d, 6, v%d" % (vNm, vTm))
    q = [vS[1], vS[2], vS[3], vP]
    for k in range(4): A("ds_read_b128 %s, v%d offset:%d" % (v4(q[k]), vNm, L_ML + 16 * k))
    ml_pub_addr(vNm, vTm)
    A("s_waitcnt lgkmcnt(0)")
    mm = [q[k >> 1] + 2 * (k & 1) for k in range(8)]
    ff = [vF0 + k for k in range(4)] + [vF1 + k for k in range(4)]
    A("v_max3_f32 v%d, v%d, v%d, v%d" % (vMx, mm[0], mm[1], mm[2]))
    A("v_max3_f32 v%d, v%d, v%d, v%d" % (vMx, vMx, mm[3], mm[4]))
    A("v_max3_f32 v%d, v%d, v%d, v%d" % (vMx, vMx, mm[5], mm[6]))
    A("v_max_f32 v%d, v%d, v%d" % (vMx, vMx, mm[7]))
    for k in range(8): A("v_sub_f32 v%d, v%d, v%d" % (ff[k], mm[k], vMx))
    for k in range(8): A("v_mul_f32 v%d, s%d, v%d" % (ff[k], sC, ff[k]))
    for k in range(8): A("v_exp_f32 v%d, v%d" % (ff[k], ff[k]))
    A("v_mul_f32 v%d, v%d, v%d" % (vL, ff[0], mm[0] + 1))
    for k in range(1, 8): A("v_fmac_f32 v%d, v%d, v%d" % (vL, ff[k], mm[k] + 1))
    A("v_min_u32 v%d, s%d, v%d" % (vMx, sSAN, vMx)); A("v_min_u32 v%d, s%d, v%d" % (vL, sSAN, vL))
    A("s_mov_b32 exec_lo, 1"); A("s_mov_b32 exec_hi, 1")
    A("global_store_dwordx2 v%d, %s, %s sc1" % (vNm, v2(vMx), sp(sWS)), count=False)
    exec_all()
    A.label("L_noml")
    A.fence(2)
    stamp(12)
    def prepx(m, e2):
        x = vX + 4 * (m & 1)
        a = m & 3
        rot = (4 * (e2 - a)) % 16
        ctl = "row_ror:%d" % rot if rot else "quad_perm:[0,1,2,3]"
        A("v_and_b32_dpp v%d, v%d, v%d %s row_mask:0xf bank_mask:0x%x" % (x + 2 + (e2 >> 1), vR + (m >> 2), vHM, ctl, 1 << e2))
    def side_work():
        A.wait_if("xf")
        A("s_mov_b32 s%d, 0" % sCNT)
        A.label("L_mlchk")
        anysent([vML, vML + 1, vH], t8)
        A("s_cbranch_vccz L_mlok")
        spin_guard("L_mlok")
        A("s_sleep 1")
        A("global_load_dwordx2 %s, v%d, %s sc1" % (v2(vML), aML, sp(sWS)), count=False)
        A("global_load_dword v%d, v%d, %s sc1" % (vH, aH, sp(sWS)), count=False)
        A("s_waitcnt vmcnt(0)")
        A("s_branch L_mlchk")
        A.label("L_mlok")
        g_, u_, a_, b_ = vS[1], vS[1] + 1, vS[1] + 2, vS[1] + 3
        A("v_add_f32_dpp v%d, v%d, v%d quad_perm:[1,0,3,2] row_mask:0xf bank_mask:0xf" % (vH, vH, vH))
        A("v_mov_b32 v%d, v%d" % (vWT, vML))
        A("v_add_f32_dpp v%d, v%d, v%d quad_perm:[2,3,0,1] row_mask:0xf bank_mask:0xf" % (vH, vH, vH))
        dpp("v_max_f32", vWT, 8)
        A("v_mov_b32 v%d, v%d" % (g_, vH)); A("v_mov_b32 v%d, v%d" % (u_, vH))
        dpp("v_max_f32", vWT, 4)
        A("v_mov_b32_dpp v%d, v%d row_ror:4 row_mask:0xf bank_mask:0xa" % (g_, vH))
        A("v_mov_b32_dpp v%d, v%d row_ror:4 row_mask:0xf bank_mask:0x5" % (u_, vH))
        dpp("v_max_f32", vWT, 2)
        rnd(g_, a_); rnd(u_, b_)
        xrows("v_max_f32", vWT, vWT + 1)
        c1 = -2.0 * 1.4426950408889634 * 0.7978845608028654
        c2 = c1 * 0.044715
        A("v_mul_f32 v%d, v%d, v%d" % (a_, g_, g_))
        A("v_mov_b32 v%d, 0x%08x" % (b_, f2u(c1)))
        A("v_fmac_f32 v%d, 0x%08x, v%d" % (b_, f2u(c2), a_))
        A("v_sub_f32 v%d, v%d, v%d" % (vWT, vML, vWT))
        A("v_mul_f32 v%d, v%d, v%d" % (b_, b_, g_))
        A("v_mul_f32 v%d, s%d, v%d" % (vWT, sC, vWT))
        A("v_exp_f32 v%d, v%d" % (b_, b_))
        A("v_exp_f32 v%d, v%d" % (vWT, vWT))
        A("v_add_f32 v%d, 1.0, v%d" % (b_, b_))
        A("v_mul_f32 v%d, v%d, v%d" % (vWT + 2, vWT, vML + 1))
        A("v_rcp_f32 v%d, v%d" % (b_, b_))
        dpp("v_add_f32", vWT + 2, 8)
        A("v_mul_f32 v%d, v%d, v%d" % (g_, g_, b_))
        rnd(g_, a_)
        dpp("v_add_f32", vWT + 2, 4)
        A("v_mul_f32 v%d, v%d, v%d" % (g_, g_, u_))
        A("v_cvt_pk_bf16_f32 v%d, v%d, v%d" % (g_, g_, g_))
        dpp("v_add_f32", vWT + 2, 2)
        A("s_cmp_lt_u32 s%d, 7" % sW)
        A("s_cselect_b32 s%d, -1, 0" % sT0)
        A("v_and_b32 v%d, s%d, v%d" % (g_, sT0, g_))
        for k in range(4): A("v_and_b32 v%d, v%d, v%d" % (vB + k, g_, vMK + 4 + k))
        xrows("v_add_f32", vWT + 2, vWT + 1)
        A("v_mfma_f32_16x16x32_bf16 %s, %s, %s, 0" % (v4(vD), v4(vWD), v4(vB)))
        A("v_rcp_f32 v%d, v%d" % (vWT + 2, vWT + 2))
        A("v_mul_f32 v%d, v%d, v%d" % (vWT, vWT, vWT + 2))
    for e2 in (0, 2, 1, 3): prepx(0, e2)
    side_done = False
    for m in range(32):
        x = vX + 4 * (m & 1)
        if m == cfg.mlat:
            A("global_load_dwordx2 %s, v%d, %s sc1" % (v2(vML), aML, sp(sWS)), tag="ml")
            A("global_load_dword v%d, v%d, %s sc1" % (vH, aH, sp(sWS)), tag="h")
            A("global_load_ushort v%d, v%d, %s" % (vXF, aXF, sp(sX)), tag="xf")
        A.wait_if("V%d" % m)
        if m > cfg.mlat and "xf" not in A.vm and not side_done:
            side_work(); side_done = True
        while vnext[0] < 32 and vnext[0] <= m + cfg.DV: vissue(1)
        if m < 31: prepx(m + 1, 0); prepx(m + 1, 2)
        A("v_mfma_f32_16x16x32_bf16 %s, %s, %s, %s" % (v4(vACC), v4(vslot(m)), v4(x + 2), "0" if m == 0 else v4(vACC)))
        if m < 31: prepx(m + 1, 1); prepx(m + 1, 3)
        A("v_mfma_f32_16x16x32_bf16 %s, %s, %s, %s" % (v4(vACC + 4), v4(vslot(m)), v4(x), "0" if m == 0 else v4(vACC + 4)))
    assert side_done
    stamp(13)
    A("ds_write_b128 v%d, %s offset:%d" % (aLO, v4(vACC), L_OP))
    A("ds_write_b128 v%d, %s offset:%d" % (aLO, v4(vACC + 4), L_OP + 256))
    A("s_waitcnt lgkmcnt(0)")
    A("s_barrier")
    A("s_cmp_gt_u32 s%d, 1" % sW)
    A("s_cbranch_scc1 L_nop3")
    rr = vVI
    A("s_lshl_b32 s%d, s%d, 10" % (sT0, sW))
    A("v_add_u32 v%d, s%d, v%d" % (t8, sT0, vL16))
    for k in range(8): A("ds_read_b128 %s, v%d offset:%d" % (v4(rr + 4 * k), t8, L_OP + 2048 * k))
    A("s_lshl_b32 s%d, s%d, 15" % (sT0, sW))
    A("v_add_u32 v%d, s%d, v%d" % (vA0, sT0, vA0))
    for k in range(8):
        A("s_waitcnt lgkmcnt(%d)" % (7 - k))
        for c in range(4):
            if k == 0: A("v_mul_f32 v%d, v%d, v%d" % (rr + c, rr + c, ff[0]))
            else: A("v_fmac_f32 v%d, v%d, v%d" % (rr + c, rr + 4 * k + c, ff[k]))
    for c in range(4): A("v_min_u32 v%d, s%d, v%d" % (rr + c, sSAN, rr + c))
    A("global_store_dwordx4 v%d, %s, %s sc1" % (vA0, v4(rr), sp(sWS)), count=False)
    A.label("L_nop3")
    A.fence(2)
    stamp(14)
    A("s_mov_b32 s%d, 0" % sCNT)
    A.label("L_p3chk")
    A("global_load_dwordx4 %s, v%d, %s sc1" % (v4(vP), aP3, sp(sWS)), count=False)
    A("s_waitcnt vmcnt(0)")
    anysent(range(vP, vP + 4), t8)
    A("s_cbranch_vccz L_p3ok")
    spin_guard("L_p3ok")
    A("s_branch L_p3chk")
    A.label("L_p3ok")
    stamp(15)
    for c in range(4): A("v_mul_f32 v%d, v%d, v%d" % (vP + c, vP + c, vWT))
    def rs4(p, rors):
        A("v_permlane32_swap_b32 v%d, v%d" % (p, p + 2))
        A("v_permlane32_swap_b32 v%d, v%d" % (p + 1, p + 3))
        A("v_add_f32 v%d, v%d, v%d" % (p, p, p + 2))
        A("v_add_f32 v%d, v%d, v%d" % (p + 1, p + 1, p + 3))
        A("v_permlane16_swap_b32 v%d, v%d" % (p, p + 1))
        A("v_add_f32 v%d, v%d, v%d" % (p, p, p + 1))
        for n in rors: dpp("v_add_f32", p, n)
    rs4(vP, (8, 4, 2))
    A("v_cvt_pk_bf16_f32 v%d, v%d, v%d" % (vP, vP, vP))
    for k in range(4):
        A("v_and_b32_dpp v%d, v%d, v%d quad_perm:[0,0,2,2] row_mask:0xf bank_mask:0xf" % (vB + k, vP, vMK + k))
    for k in range(4):
        A("v_and_b32_dpp v%d, v%d, v%d quad_perm:[1,1,3,3] row_mask:0xf bank_mask:0xf" % (vB2 + k, vP, vMK + k))
    A("v_mfma_f32_16x16x32_bf16 %s, %s, %s, %s" % (v4(vD), v4(vWO0), v4(vB), v4(vD)))
    A("v_mfma_f32_16x16x32_bf16 %s, %s, %s, %s" % (v4(vD), v4(vWO1), v4(vB2), v4(vD)))
    A("s_lshl_b32 s%d, s%d, 10" % (sT0, sW))
    A("v_add_u32 v%d, s%d, v%d" % (t8, sT0, vL16))
    A("ds_write_b128 v%d, %s offset:%d" % (t8, v4(vD), L_SP))
    A("s_waitcnt lgkmcnt(0)")
    A("s_barrier")
    A("s_cmp_lg_u32 s%d, 0" % sW)
    A("s_cbranch_scc1 L_end2")
    for k in range(8): A("ds_read_b128 %s, v%d offset:%d" % (v4(rr + 4 * k), vL16, L_SP + 1024 * k))
    for k in range(1, 8):
        A("s_waitcnt lgkmcnt(%d)" % (7 - k))
        for c in range(4): A("v_add_f32 v%d, v%d, v%d" % (rr + c, rr + c, rr + 4 * k + c))
    for c in range(4): A("v_min_u32 v%d, s%d, v%d" % (rr + c, sSAN, rr + c))
    A("global_store_dwordx4 v%d, %s, %s sc1" % (vA1, v4(rr), sp(sWS)), count=False)
    stamp(16)
    A("s_cmp_ge_u32 s2, 128")
    A("s_cbranch_scc1 L_end2")
    A("s_lshl_b32 s%d, s2, 10" % sT0)
    A("s_add_u32 s%d, s%d, 0x%x" % (sT0, sT0, P4OFF))
    A("v_add_u32 v%d, s%d, v%d" % (vT, sT0, vL16))
    A("v_add_u32 v%d, 0x20000, v%d" % (vT + 1, vT))
    A("s_mov_b32 s%d, 0" % sCNT)
    A.label("L_p4poll")
    A("global_load_dwordx4 %s, v%d, %s sc1" % (v4(vP), vT, sp(sWS)), count=False)
    A("global_load_dwordx4 %s, v%d, %s sc1" % (v4(vPY), vT + 1, sp(sWS)), count=False)
    A("s_waitcnt vmcnt(0)")
    anysent(list(range(vP, vP + 4)) + list(range(vPY, vPY + 4)), t8)
    A("s_cbranch_vccz L_p4ok")
    A("s_add_u32 s%d, s%d, 1" % (sCNT, sCNT))
    A("s_cmp_gt_u32 s%d, %d" % (sCNT, cfg.spin_max))
    A("s_cbranch_scc0 L_p4poll")
    A.label("L_p4ok")
    stamp(17)
    p, y = vP, vPY
    for r in (p, y):
        A("v_permlane32_swap_b32 v%d, v%d" % (r, r + 2))
        A("v_permlane32_swap_b32 v%d, v%d" % (r + 1, r + 3))
    for r in (p, y):
        A("v_add_f32 v%d, v%d, v%d" % (r, r, r + 2))
        A("v_add_f32 v%d, v%d, v%d" % (r + 1, r + 1, r + 3))
    for r in (p, y): A("v_permlane16_swap_b32 v%d, v%d" % (r, r + 1))
    for r in (p, y): A("v_add_f32 v%d, v%d, v%d" % (r, r, r + 1))
    for n in (8, 4, 2, 1):
        for r in (p, y): dpp("v_add_f32", r, n)
    rnd(y, y + 1); rnd(p, p + 1)
    A("v_mul_f32 v%d, s%d, v%d" % (y + 2, sC, y))
    A("v_exp_f32 v%d, -v%d" % (y + 2, y + 2))
    A("v_add_f32 v%d, 1.0, v%d" % (y + 2, y + 2))
    A("v_rcp_f32 v%d, v%d" % (y + 2, y + 2))
    A("v_mul_f32 v%d, v%d, v%d" % (y, y, y + 2))
    rnd(y, y + 1)
    A("v_mul_f32 v%d, v%d, v%d" % (p, p, y))
    rnd(p, p + 1)
    A("v_lshlrev_b32 v%d, 16, v%d" % (vXF, vXF))
    A("v_add_f32 v%d, v%d, v%d" % (p, p, vXF))
    A("v_cvt_pk_bf16_f32 v%d, v%d, v%d" % (p, p, p))
    A("s_mov_b32 exec_lo, 0x00010001"); A("s_mov_b32 exec_hi, 0x00010001")
    A("global_store_short v%d, v%d, %s" % (aXF, p, sp(sOUT)), count=False)
    A.label("L_end2")
    if cfg.stamps:
        stamp(NST - 1)
        exec_all()
        A("s_waitcnt lgkmcnt(0)")
        A("s_lshl_b32 s%d, s2, 3" % sT0)
        A("s_add_u32 s%d, s%d, s%d" % (sT0, sT0, sW))
        A("s_lshl_b32 s%d, s%d, 8" % (sT0, sT0))
        A("s_add_u32 s%d, s%d, 0x200000" % (sT0, sT0))
        A("v_mov_b32 v%d, s%d" % (vT, sT0))
        A("s_mov_b64 exec, 1")
        for k in range(NST):
            A("v_mov_b32 v%d, s%d" % (vT + 4, 60 + 2 * k)); A("v_mov_b32 v%d, s%d" % (vT + 5, 61 + 2 * k))
            A("global_store_dwordx2 v%d, %s, %s offset:%d" % (vT, v2(vT + 4), sp(sWS), 8 * k), count=False)
            A("s_nop 1")
        if cfg.probe >= 0:
            A("s_cmp_lg_u32 s%d, 0" % sW)
            A("s_cbranch_scc1 L_end")
            A("s_sub_u32 s%d, s%d, s60" % (sT0, 60 + 2 * cfg.probe))
            A("s_min_u32 s%d, s%d, 20000" % (sT0, sT0))
            A("s_mul_i32 s%d, s%d, 10" % (sT0, sT0))
            A("s_add_u32 s%d, s%d, s%d" % (sT0, sT0, 60 + 2 * (NST - 1)))
            A.label("L_probe")
            A("s_memrealtime s[56:57]")
            A("s_waitcnt lgkmcnt(0)")
            A("s_sub_u32 s%d, s%d, s56" % (sT1, sT0))
            A("s_cmp_gt_i32 s%d, 0" % sT1)
            A("s_cbranch_scc1 L_probe")
    A.label("L_end")
    return A

HEADER = open("cdna_kernels/%s.s.ref" % NAME).read().split("; Override launch geometry")[0]

def build(cfg, path):
    A = gen(cfg)
    s = HEADER
    s += "; @launch grid=(256,1,1) block=(512,1,1) lds=%d\n" % L_END
    s += '.amdgcn_target "amdgcn-amd-amdhsa--gfx950"\n.text\n.globl %s_kernel\n.p2align 8\n.type %s_kernel,@function\n%s_kernel:\n' % (NAME, NAME, NAME)
    s += A.text()
    s += "s_endpgm\n"
    s += """.section .rodata,"a"
.p2align 6
.amdhsa_kernel %s_kernel
  .amdhsa_next_free_vgpr 256
  .amdhsa_next_free_sgpr 102
  .amdhsa_accum_offset 256
  .amdhsa_group_segment_fixed_size 0
  .amdhsa_kernarg_size 96
  .amdhsa_user_sgpr_count 2
  .amdhsa_user_sgpr_kernarg_segment_ptr 1
  .amdhsa_system_sgpr_workgroup_id_x 1
.end_amdhsa_kernel
""" % NAME
    open(path, "w").write(s)
    return A

if __name__ == "__main__":
    cfg = Cfg()
    out = "cdna_kernels/%s.s" % NAME
    for a in sys.argv[1:]:
        k, v = a.split("=", 1)
        if k == "out": out = v; continue
        cur = getattr(cfg, k)
        setattr(cfg, k, type(cur)(int(v)) if isinstance(cur, (bool, int)) else v)
    A = build(cfg, out)
    print("wrote", out, "lines", len(A.out), "auto nops", A.nops_added)
```

```python
import sys, struct
from emit import Asm

NAME = "recurrent_scan__gqa_block_cached__glu_gated_geglu__decode"
def f2u(x): return struct.unpack("<I", struct.pack("<f", x))[0]

class Cfg:
    kv_flags = "nt"
    w_flags = "nt"
    w2_flags = "nt"
    D = 6
    DV = 6
    D1 = 10
    D0 = 16
    nvb = 6
    mlat = -1
    prio = 3
    spin_max = 1 << 17
    stamps = False
    probe = -1
    probewg = -1

QPOFF = 0x0
FPOFF = 0x10000
MLOFF = 0x20000
EPOFF = 0x30000
P3OFF = 0x40000
P4OFF = 0x100000
L_FL, L_F, L_Q, L_ML, L_OP, L_SP, L_END = 0, 256, 1024, 512, 2048, 18432, 26624
F_Q, F_CNT = L_FL + 4, L_FL + 8

def gen(cfg):
    A = Asm()
    sX, sK, sV, sWQ, sWO, sWG, sWU, sWD, sOUT, sDBG, sWS = 4, 6, 8, 10, 12, 16, 18, 20, 22, 24, 26
    def sp(r): return "s[%d:%d]" % (r, r + 1)
    def v4(r): return "v[%d:%d]" % (r, r + 3)
    def v2(r): return "v[%d:%d]" % (r, r + 1)
    sW, sG, sSP, sKO, sVO = 3, 36, 37, 38, 39
    sT0, sT1, sT2, sT3 = 40, 41, 42, 43
    sHI, sC, sSCL, sCNT, sNM = 44, 45, 46, 48, 49
    sTAG, sTAG8, sFF = 14, 15, 59
    sJ, sCB, sHH, sSTR, sPUB, sQD = 50, 51, 47, 56, 57, 58
    vLANE, vKO, vL16, vHM, vZ = 1, 2, 3, 4, 5
    vMK = 6
    vA0, vA1 = 14, 15
    vQ = 16
    vR = 20
    vACC = 28
    vX = 36
    vT = 46
    vVI = 56
    vKS = 128
    NVI = 18
    def kslot(i): return vKS + 4 * i
    qk_order = [4 * k + a for a in range(4) for k in range(8)]
    def vslot(m): return vVI + 4 * m if m < NVI else kslot(qk_order[m - NVI])
    fr = [kslot(t) for t in qk_order[14:]]
    vWO0, vWO1, vWD, vML, vP, vPY, vD, vB, vB2, vWT, vF0, vF1 = fr[:12]
    vS = [fr[12], fr[13], fr[14], fr[15]]
    vH = fr[16]
    vXF = fr[16] + 1
    vTG = 0

    def rnd(v, t):
        A("v_cvt_pk_bf16_f32 v%d, v%d, v%d" % (t, v, v))
        A("v_lshlrev_b32 v%d, 16, v%d" % (v, t))
    def dpp(op, v, n):
        A("%s_dpp v%d, v%d, v%d row_ror:%d row_mask:0xf bank_mask:0xf" % (op, v, v, v, n))
    def xrows(op, v, t):
        A("v_mov_b32 v%d, v%d" % (t, v))
        A("v_permlane16_swap_b32 v%d, v%d" % (t, v))
        A("%s v%d, v%d, v%d" % (op, v, t, v))
        A("v_mov_b32 v%d, v%d" % (t, v))
        A("v_permlane32_swap_b32 v%d, v%d" % (t, v))
        A("%s v%d, v%d, v%d" % (op, v, t, v))
    def allred(op, v, t, rors=(8, 4, 2, 1)):
        for n in rors: dpp(op, v, n)
        xrows(op, v, t)
    def unpack(dst_lo, dst_hi, src):
        A("v_lshlrev_b32 v%d, 16, v%d" % (dst_lo, src))
        A("v_and_b32 v%d, s%d, v%d" % (dst_hi, sHI, src))
    def exec_all(): A("s_mov_b64 exec, -1")
    NST = 20
    def stamp(k):
        if cfg.stamps: A("s_memrealtime s[%d:%d]" % (60 + 2 * k, 61 + 2 * k))
    def badtag(regs, t, t2, extra=None):
        regs = list(regs)
        if len(regs) % 2: regs.append(regs[-1])
        prs = [(regs[i], regs[i + 1]) for i in range(0, len(regs), 2)]
        A("v_bitop3_b32 v%d, v%d, v%d, s%d bitop3:0x7e" % (t, prs[0][0], prs[0][1], sTAG8))
        for k, (a, b) in enumerate(prs[1:]):
            A("v_bitop3_b32 v%d, v%d, v%d, s%d bitop3:0x7e" % (t2, a, b, sTAG8))
            if k < len(prs) - 2: A("v_or_b32 v%d, v%d, v%d" % (t, t, t2))
        A("v_bitop3_b32 v%d, v%d, v%d, s%d bitop3:0xa8" % (t, t, t2 if len(prs) > 1 else t, sFF))
        if extra is not None:
            A("v_xor_b32 v%d, s%d, v%d" % (t2, sTAG, extra))
            A("v_or_b32 v%d, v%d, v%d" % (t, t, t2))
        A("v_cmp_ne_u32 vcc, 0, v%d" % t)
    def settag(r): A("v_and_or_b32 v%d, v%d, s%d, v%d" % (r, r, sNM, vTG))
    def tags():
        A("s_add_u32 s%d, s%d, 1" % (sTAG, sTAG))
        A("s_and_b32 s%d, s%d, 0xff" % (sTAG8, sTAG))
        A("v_mov_b32 v%d, s%d" % (vTG, sTAG8))
    def spin_guard(lbl_ok):
        A("s_add_u32 s%d, s%d, 1" % (sCNT, sCNT))
        A("s_cmp_gt_u32 s%d, %d" % (sCNT, cfg.spin_max))
        A("s_cbranch_scc1 %s" % lbl_ok)
    def lds_wait(name, off, val, t):
        A("s_mov_b32 s%d, 0" % sCNT)
        A.label("L_%s" % name)
        A("ds_read_b32 v%d, v%d offset:%d" % (t, vZ, off))
        A("s_waitcnt lgkmcnt(0)")
        A("v_readfirstlane_b32 s%d, v%d" % (sT0, t))
        A("s_cmp_eq_u32 s%d, %d" % (sT0, val))
        A("s_cbranch_scc1 L_%s_ok" % name)
        A("s_add_u32 s%d, s%d, 1" % (sCNT, sCNT))
        A("s_cmp_gt_u32 s%d, %d" % (sCNT, cfg.spin_max * 16))
        A("s_cbranch_scc1 L_%s_ok" % name)
        A("s_sleep 1")
        A("s_branch L_%s" % name)
        A.label("L_%s_ok" % name)

    A("s_cmp_ge_u32 s2, 256")
    A("s_cbranch_scc1 L_end")
    A("s_load_dwordx16 s[4:19], s[0:1], 0")
    A("s_load_dwordx8 s[20:27], s[0:1], 64")
    if cfg.stamps:
        for k in range(1, NST): A("s_mov_b64 s[%d:%d], 0" % (60 + 2 * k, 61 + 2 * k))
    stamp(0)
    A("v_mov_b32 v%d, 0" % vZ)
    for k in range(10): A("v_mov_b32 v%d, 0" % (vX + k))
    A("v_and_b32 v%d, 63, v0" % vLANE)
    A("v_lshrrev_b32 v%d, 6, v0" % vA0)
    A("ds_write_b128 v%d, %s offset:%d" % (vZ, v4(vX), L_FL))
    A("v_lshlrev_b32 v%d, 4, v%d" % (vL16, vLANE))
    A("v_readfirstlane_b32 s%d, v%d" % (sW, vA0))
    A("v_bfe_u32 v%d, v%d, 2, 2" % (vA1, vLANE))
    A("v_lshlrev_b32 v%d, 8, v%d" % (vKO, vA1))
    A("v_lshrrev_b32 v%d, 4, v%d" % (vA1, vLANE))
    A("v_lshl_add_u32 v%d, v%d, 6, v%d" % (vKO, vA1, vKO))
    A("v_and_b32 v%d, 3, v%d" % (vA1, vLANE))
    A("v_lshl_add_u32 v%d, v%d, 4, v%d" % (vKO, vA1, vKO))
    A("s_and_b32 s%d, s2, 7" % sG)
    A("s_lshr_b32 s%d, s2, 3" % sSP)
    A("s_lshl_b32 s%d, s%d, 23" % (sKO, sG))
    A("s_lshl_b32 s%d, s%d, 18" % (sT0, sSP))
    A("s_add_u32 s%d, s%d, s%d" % (sKO, sKO, sT0))
    A("s_lshl_b32 s%d, s%d, 12" % (sT0, sW)); step = 32768
    A("s_add_u32 s%d, s%d, s%d" % (sKO, sKO, sT0))
    A("s_mov_b32 s%d, s%d" % (sVO, sKO))
    A("s_mov_b32 s30, 0x4000000"); A("s_mov_b32 s31, 0x20000")
    A("s_mov_b32 s34, 0x4000000"); A("s_mov_b32 s35, 0x20000")
    A("s_mov_b32 s%d, 0xffff0000" % sHI)
    A("s_mov_b32 s%d, 0xffffff00" % sNM)
    A("s_movk_i32 s%d, 0xff" % sFF)
    A("s_lshr_b32 s%d, s%d, 2" % (sJ, sSP))
    A("s_and_b32 s%d, s%d, 3" % (sCB, sSP))
    A("s_lshl_b32 s%d, s%d, 3" % (sHH, sG))
    A("s_add_u32 s%d, s%d, s%d" % (sHH, sHH, sJ))
    A("s_cmp_lt_u32 s%d, 2" % sW)
    A("s_cbranch_scc1 L_gemv")
    def kload(i):
        if i and i % 4 == 0: A("s_add_u32 s%d, s%d, %d" % (sKO, sKO, step))
        A("buffer_load_dwordx4 %s, v%d, s[28:31], s%d offen offset:%d %s" % (v4(kslot(i)), vKO, sKO, (i % 4) * 1024, cfg.kv_flags), tag="K%d" % i)
    def kstream(D, first, barrier_after=None):
        for i in range(first, 32):
            if i - D >= first: A.wait_if("K%d" % (i - D))
            kload(i)
            if barrier_after is not None and i == barrier_after:
                A("s_barrier")
                stamp(2)
    def srds():
        A("s_waitcnt lgkmcnt(0)")
        A("s_mov_b32 s28, s%d" % sK); A("s_mov_b32 s29, s%d" % (sK + 1))
        A("s_mov_b32 s32, s%d" % sV); A("s_mov_b32 s33, s%d" % (sV + 1))
        A("s_load_dword s%d, %s, 0x%x" % (sTAG, sp(sWS), EPOFF))
        A("s_barrier")
        stamp(1)
    srds()
    A.vm = []
    kstream(cfg.D, 0)
    A("s_waitcnt lgkmcnt(0)")
    tags()
    A("s_branch L_join")
    def p3_pub_addr(dst, t0, t1):
        A("v_lshrrev_b32 v%d, 1, v%d" % (t0, vLANE))
        A("v_lshlrev_b32 v%d, 10, v%d" % (t0, t0))
        A("v_and_b32 v%d, 1, v%d" % (t1, vLANE))
        A("v_lshl_add_u32 v%d, v%d, 4, v%d" % (t0, t1, t0))
        A("s_lshl_b32 s%d, s%d, 16" % (sT0, sG))
        A("s_lshl_b32 s%d, s%d, 5" % (sT1, sSP))
        A("s_add_u32 s%d, s%d, s%d" % (sT0, sT0, sT1))
        A("s_add_u32 s%d, s%d, 0x%x" % (sT0, sT0, P3OFF))
        A("v_add_u32 v%d, s%d, v%d" % (dst, sT0, t0))
    def p4_pub_addr(dst, t0, t1):
        A("v_bfe_u32 v%d, v%d, 3, 1" % (t0, vLANE))
        A("v_lshlrev_b32 v%d, 17, v%d" % (t0, t0))
        A("v_lshrrev_b32 v%d, 4, v%d" % (t1, vLANE))
        A("v_lshl_add_u32 v%d, v%d, 13, v%d" % (t0, t1, t0))
        A("v_and_b32 v%d, 7, v%d" % (t1, vLANE))
        A("v_lshl_add_u32 v%d, v%d, 10, v%d" % (t0, t1, t0))
        A("s_lshl_b32 s%d, s%d, 15" % (sT0, sCB))
        A("s_lshl_b32 s%d, s%d, 4" % (sT1, sHH))
        A("s_add_u32 s%d, s%d, s%d" % (sT0, sT0, sT1))
        A("s_add_u32 s%d, s%d, 0x%x" % (sT0, sT0, P4OFF))
        A("v_add_u32 v%d, s%d, v%d" % (dst, sT0, t0))
    def ml_pub_addr(dst, h):
        A("s_lshl_b32 s%d, s%d, 11" % (sT0, sG))
        A("s_lshl_b32 s%d, s%d, 4" % (sT1, sSP))
        A("s_add_u32 s%d, s%d, s%d" % (sT0, sT0, sT1))
        A("s_add_u32 s%d, s%d, 0x%x" % (sT0, sT0, MLOFF))
        A("v_lshlrev_b32 v%d, 9, v%d" % (dst, h))
        A("v_add_u32 v%d, s%d, v%d" % (dst, sT0, dst))
    def qp_slot(dst):
        A("s_lshl_b32 s%d, s%d, 13" % (dst, sG))
        A("s_and_b32 s%d, s%d, 7" % (sT1, sSP))
        A("s_lshl_b32 s%d, s%d, 10" % (sT1, sT1))
        A("s_add_u32 s%d, s%d, s%d" % (dst, dst, sT1))
        A("s_lshr_b32 s%d, s%d, 3" % (sT1, sSP))
        A("s_lshl_b32 s%d, s%d, 8" % (sT1, sT1))
        A("s_add_u32 s%d, s%d, s%d" % (dst, dst, sT1))
    A.label("L_gemv")
    if cfg.prio: A("s_setprio %d" % cfg.prio)
    vW = vKS
    vXL, vXO, vSEL, vXP, vAa = 56, 60, 68, 76, 84
    vN = 96
    vDD = 92
    A("v_lshrrev_b32 v%d, 3, v%d" % (vT, vLANE))
    A("v_and_b32 v%d, 7, v%d" % (vT + 1, vLANE))
    A("s_mov_b32 s55, 0x20000")
    A("s_cmp_eq_u32 s%d, 0" % sW)
    A("s_cbranch_scc0 L_gemv_f")
    A("s_movk_i32 s%d, 0x2000" % sSTR)
    A("s_lshr_b32 s%d, s%d, 3" % (sQD, sSP))
    A("s_and_b32 s%d, s%d, 7" % (sT2, sSP))
    A("s_lshl_b32 s%d, s%d, 3" % (sT3, sG))
    A("s_add_u32 s%d, s%d, s%d" % (sT2, sT2, sT3))
    qp_slot(sPUB)
    A("s_mov_b32 s54, 0x400000")
    srds()
    A("s_mov_b32 s52, s%d" % sWQ); A("s_mov_b32 s53, s%d" % (sWQ + 1))
    A("s_branch L_gemv_go")
    A.label("L_gemv_f")
    A("s_movk_i32 s%d, 3584" % sSTR)
    A("s_and_b32 s%d, s2, 3" % sQD)
    A("s_lshr_b32 s%d, s2, 3" % sT2)
    A("s_lshl_b32 s%d, s2, 8" % sPUB)
    A("s_add_u32 s%d, s%d, 0x%x" % (sPUB, sPUB, FPOFF))
    A("s_mov_b32 s54, %d" % (512 * 3584))
    srds()
    A("s_bitcmp1_b32 s2, 2")
    A("s_cselect_b32 s52, s%d, s%d" % (sWU, sWG)); A("s_cselect_b32 s53, s%d, s%d" % (sWU + 1, sWG + 1))
    A("s_cmp_lt_u32 s2, 224")
    A("s_cbranch_scc1 L_gemv_go")
    A("s_waitcnt lgkmcnt(0)")
    tags()
    A("s_branch L_klate")
    A.label("L_gemv_go")
    A.vm = []
    A("global_load_dwordx4 %s, v%d, %s" % (v4(vXL), vL16, sp(sX)), tag="x")
    A("s_lshl_b32 s%d, s%d, 8" % (sT0, sQD))
    A("v_lshlrev_b32 v%d, 5, v%d" % (vT + 2, vT))
    A("v_add_u32 v%d, s%d, v%d" % (vT + 2, sT0, vT + 2))
    A("global_load_dwordx4 %s, v%d, %s" % (v4(vXO), vT + 2, sp(sX)), tag="x")
    A("global_load_dwordx4 %s, v%d, %s offset:16" % (v4(vXO + 4), vT + 2, sp(sX)), tag="x")
    A("s_lshl_b32 s%d, s%d, 4" % (sT0, sSTR))
    A("v_mul_lo_u32 v%d, v%d, s%d" % (vT + 3, vT, sT0))
    A("v_lshl_add_u32 v%d, v%d, 4, v%d" % (vT + 3, vT + 1, vT + 3))
    A("s_lshl_b32 s%d, s%d, 7" % (sT0, sQD))
    A("s_mul_i32 s%d, s%d, s%d" % (sT0, sT0, sSTR))
    A("s_lshl_b32 s%d, s%d, 7" % (sT2, sT2))
    A("s_add_u32 s%d, s%d, s%d" % (sT0, sT0, sT2))
    for t in range(16):
        A("buffer_load_dwordx4 %s, v%d, s[52:55], s%d offen %s" % (v4(vW + 4 * t), vT + 3, sT0, cfg.w_flags), tag="W%d" % t)
        if t < 15: A("s_add_u32 s%d, s%d, s%d" % (sT0, sT0, sSTR))
    stamp(2)
    A("v_and_b32 v%d, 1, v%d" % (vT + 2, vT + 1))
    A("v_cmp_eq_u32 vcc, 1, v%d" % (vT + 2))
    A("v_mov_b32 v%d, 0x0c0c0100" % (vT + 4)); A("v_mov_b32 v%d, 0x01000c0c" % (vT + 5))
    A("v_cndmask_b32 v%d, v%d, v%d, vcc" % (vT + 4, vT + 4, vT + 5))
    A("v_mov_b32 v%d, 0x0c0c0302" % (vT + 6)); A("v_mov_b32 v%d, 0x03020c0c" % (vT + 5))
    A("v_cndmask_b32 v%d, v%d, v%d, vcc" % (vT + 5, vT + 6, vT + 5))
    A("v_mov_b32 v%d, 0x0c0c0c0c" % (vT + 6))
    A("v_lshrrev_b32 v%d, 1, v%d" % (vT + 2, vT + 1))
    for k in range(4):
        A("v_cmp_eq_u32 vcc, %d, v%d" % (k, vT + 2))
        A("v_cndmask_b32 v%d, v%d, v%d, vcc" % (vSEL + 2 * k, vT + 6, vT + 4))
        A("v_cndmask_b32 v%d, v%d, v%d, vcc" % (vSEL + 2 * k + 1, vT + 6, vT + 5))
    A("v_bfe_u32 v%d, v%d, 4, 1" % (vT + 2, vLANE))
    A("v_lshl_add_u32 v%d, v%d, 1, v%d" % (vT + 2, vT + 1, vT + 2))
    A("v_lshlrev_b32 v%d, 4, v%d" % (vT + 2, vT + 2))
    A("v_add_u32 v%d, s%d, v%d" % (vT + 7, sPUB, vT + 2))
    A("s_waitcnt lgkmcnt(0)")
    tags()
    A.wait_vm("x")
    stamp(3)
    n = vN
    for k in range(4): unpack(n + 2 * k, n + 1 + 2 * k, vXL + k)
    m_, t_, v_, u_ = n + 8, n + 9, n + 10, n + 11
    A("v_add_f32 v%d, v%d, v%d" % (m_, n, n + 1)); A("v_add_f32 v%d, v%d, v%d" % (t_, n + 2, n + 3))
    A("v_add_f32 v%d, v%d, v%d" % (v_, n + 4, n + 5)); A("v_add_f32 v%d, v%d, v%d" % (u_, n + 6, n + 7))
    A("v_add_f32 v%d, v%d, v%d" % (m_, m_, t_)); A("v_add_f32 v%d, v%d, v%d" % (v_, v_, u_)); A("v_add_f32 v%d, v%d, v%d" % (m_, m_, v_))
    allred("v_add_f32", m_, t_)
    A("v_mul_f32 v%d, 0x3b000000, v%d" % (m_, m_))
    for k in range(8): A("v_sub_f32 v%d, v%d, v%d" % (n + k, n + k, m_))
    A("v_mul_f32 v%d, v%d, v%d" % (v_, n, n)); A("v_mul_f32 v%d, v%d, v%d" % (u_, n + 1, n + 1))
    for k in range(2, 8, 2):
        A("v_fmac_f32 v%d, v%d, v%d" % (v_, n + k, n + k)); A("v_fmac_f32 v%d, v%d, v%d" % (u_, n + k + 1, n + k + 1))
    A("v_add_f32 v%d, v%d, v%d" % (v_, v_, u_))
    allred("v_add_f32", v_, t_)
    A("v_mul_f32 v%d, 0x3b000000, v%d" % (v_, v_))
    rnd(m_, t_)
    rnd(v_, t_)
    A("v_add_f32 v%d, 0x%08x, v%d" % (v_, f2u(1e-5), v_))
    rnd(v_, t_)
    A("v_sqrt_f32 v%d, v%d" % (v_, v_))
    z = n + 12
    for k in range(8): unpack(z + 2 * k, z + 2 * k + 1, vXO + k)
    rnd(v_, t_)
    A("v_rcp_f32 v%d, v%d" % (u_, v_))
    for k in range(16): A("v_sub_f32 v%d, v%d, v%d" % (z + k, z + k, m_))
    for k in range(8): A("v_cvt_pk_bf16_f32 v%d, v%d, v%d" % (vXP + k, z + 2 * k, z + 2 * k + 1))
    for k in range(8): unpack(z + 2 * k, z + 2 * k + 1, vXP + k)
    for k in range(16):
        A("v_mul_f32 v%d, v%d, v%d" % (n + (k & 7), z + k, u_))
        A("v_fma_f32 v%d, -v%d, v%d, v%d" % (z + k, n + (k & 7), v_, z + k))
        A("v_fma_f32 v%d, v%d, v%d, v%d" % (z + k, z + k, u_, n + (k & 7)))
    for k in range(8): A("v_cvt_pk_bf16_f32 v%d, v%d, v%d" % (vXP + k, z + 2 * k, z + 2 * k + 1))
    stamp(4)
    def prepa(t):
        for k in range(4):
            A("v_perm_b32 v%d, v%d, v%d, v%d" % (vAa + 4 * (t & 1) + k, vXP + (t >> 1), vXP + (t >> 1), vSEL + 2 * k + (t & 1)))
    prepa(0)
    for t in range(16):
        if t < 15: prepa(t + 1)
        A.wait_vm("W%d" % t)
        A("v_mfma_f32_16x16x32_bf16 %s, %s, %s, %s" % (v4(vDD), v4(vAa + 4 * (t & 1)), v4(vW + 4 * t), "0" if t == 0 else v4(vDD)))
    stamp(5)
    for r in range(4): A("v_permlane32_swap_b32 v%d, v%d" % (vDD + r, n + r))
    for r in range(4):
        A("v_add_f32_dpp v%d, v%d, v%d row_ror:8 row_mask:0xf bank_mask:0xf" % (vDD + r, n + r, vDD + r))
    for r in range(4): settag(vDD + r)
    A("s_mov_b64 exec, 0x00ff00ff")
    A("global_store_dwordx4 v%d, %s, %s sc1" % (vT + 7, v4(vDD), sp(sWS)), count=False)
    exec_all()
    stamp(6)
    A("s_cmp_eq_u32 s%d, 0" % sW)
    A("s_cbranch_scc0 L_klate")
    A("v_lshrrev_b32 v%d, 4, v%d" % (vT + 2, vLANE))
    A("v_lshlrev_b32 v%d, 10, v%d" % (vT + 2, vT + 2))
    A("v_and_b32 v%d, 15, v%d" % (vT + 3, vLANE))
    A("v_lshl_add_u32 v%d, v%d, 4, v%d" % (vT + 2, vT + 3, vT + 2))
    A("s_lshl_b32 s%d, s%d, 13" % (sT1, sG))
    A("s_add_u32 s%d, s%d, 0x%x" % (sT1, sT1, QPOFF + 4096))
    A("v_add_u32 v%d, s%d, v%d" % (vT + 2, sT1, vT + 2))
    vG = 56
    A("s_mov_b32 s%d, 0" % sCNT)
    A.label("L_qchk")
    for u2 in range(2):
        for qd in range(4):
            A("global_load_dwordx4 %s, v%d, %s offset:%d sc1" % (v4(vG + 16 * u2 + 4 * qd), vT + 2, sp(sWS), u2 * 4096 + qd * 256 - 4096), count=False)
    A("s_waitcnt vmcnt(0)")
    badtag(range(vG, vG + 32), vT + 3, vT + 4)
    A("s_cbranch_vccz L_qok")
    spin_guard("L_qok")
    A("s_branch L_qchk")
    A.label("L_qok")
    for u2 in range(2):
        b = vG + 16 * u2
        for c in range(4):
            A("v_add_f32 v%d, v%d, v%d" % (b + c, b + c, b + 4 + c)); A("v_add_f32 v%d, v%d, v%d" % (b + 8 + c, b + 8 + c, b + 12 + c))
        for c in range(4): A("v_add_f32 v%d, v%d, v%d" % (b + c, b + c, b + 8 + c))
        A("v_cvt_pk_bf16_f32 v%d, v%d, v%d" % (b, b, b + 1)); A("v_cvt_pk_bf16_f32 v%d, v%d, v%d" % (b + 1, b + 2, b + 3))
    A("v_lshlrev_b32 v%d, 3, v%d" % (vT + 3, vLANE))
    A("v_mov_b32 v%d, 1" % (vT + 4))
    A("ds_write_b64 v%d, %s offset:%d" % (vT + 3, v2(vG), L_Q))
    A("ds_write_b64 v%d, %s offset:%d" % (vT + 3, v2(vG + 16), L_Q + 512))
    A("s_waitcnt lgkmcnt(0)")
    A("ds_write_b32 v%d, v%d offset:%d" % (vZ, vT + 4, F_Q))
    stamp(8)
    if cfg.prio: A("s_setprio 0")
    A.vm = []
    kstream(cfg.D0, 0)
    A("s_branch L_join")
    A.label("L_klate")
    if cfg.prio: A("s_setprio 0")
    A.vm = []
    kstream(cfg.D1, 0)
    A.label("L_join")
    A.vm = ["K%d" % i for i in range(32)]
    stamp(9)
    seq = ["K%d" % i for i in range(32)]
    vnext = [0]
    def vissue(n=1):
        for _ in range(n):
            m = vnext[0]
            if m >= 32: return
            vnext[0] += 1
            A.wait_if(seq[len(seq) - cfg.DV])
            if m and m % 4 == 0: A("s_add_u32 s%d, s%d, %d" % (sVO, sVO, step))
            A("buffer_load_dwordx4 %s, v%d, s[32:35], s%d offen offset:%d %s" % (v4(vslot(m)), vL16, sVO, (m % 4) * 1024, cfg.kv_flags), tag="V%d" % m)
            seq.append("V%d" % m)
    vissue(1)
    A("s_mov_b32 s%d, 0x%08x" % (sC, f2u(1.4426950408889634)))
    A("s_mov_b32 s%d, 0x%08x" % (sSCL, f2u(128 ** -0.5)))
    A("v_bfe_u32 v%d, v%d, 2, 1" % (vT, vLANE))
    A("v_lshlrev_b32 v%d, 4, v%d" % (vT, vT))
    A("v_mov_b32 v%d, 0xffff" % (vT + 1))
    A("v_lshlrev_b32 v%d, v%d, v%d" % (vHM, vT, vT + 1))
    A("v_and_b32 v%d, 1, v%d" % (vT, vLANE))
    A("v_lshlrev_b32 v%d, 4, v%d" % (vT, vT))
    A("v_lshlrev_b32 v%d, v%d, v%d" % (vT + 2, vT, vT + 1))
    A("v_bfe_u32 v%d, v%d, 1, 3" % (vT, vLANE))
    for k in range(8):
        A("v_cmp_eq_u32 vcc, %d, v%d" % (k, vT))
        A("v_cndmask_b32 v%d, 0, v%d, vcc" % (vMK + k, vT + 2))
    vissue(1)
    p3_pub_addr(vA0, vT, vT + 1)
    p4_pub_addr(vA1, vT, vT + 1)
    vissue(1)
    A("s_lshr_b32 s%d, s%d, 1" % (sT0, sHH))
    A("s_lshl_b32 s%d, s%d, 7" % (sT0, sT0))
    A("s_lshr_b32 s%d, s%d, 1" % (sT1, sW))
    A("s_lshl_b32 s%d, s%d, 5" % (sT1, sT1))
    A("s_add_u32 s%d, s%d, s%d" % (sT0, sT0, sT1))
    A("s_and_b32 s%d, s%d, 1" % (sT1, sHH))
    A("s_lshl_b32 s%d, s%d, 2" % (sT1, sT1))
    A("s_add_u32 s%d, s%d, s%d" % (sT0, sT0, sT1))
    A("s_and_b32 s%d, s%d, 1" % (sT1, sW))
    A("s_lshl_b32 s%d, s%d, 1" % (sT1, sT1))
    A("s_add_u32 s%d, s%d, s%d" % (sT0, sT0, sT1))
    A("s_lshl_b32 s%d, s%d, 10" % (sT0, sT0))
    A("s_lshl_b32 s%d, s%d, 8" % (sT1, sCB))
    A("s_add_u32 s%d, s%d, s%d" % (sT0, sT0, sT1))
    aWO, aWD, aH, aML, aP3, aLO, aXF, aQ = vT, vT + 1, vT + 2, vT + 3, vT + 4, vT + 5, vT + 6, vT + 7
    t8, t9 = vT + 8, vT + 9
    A("v_lshrrev_b32 v%d, 4, v%d" % (t8, vLANE))
    A("v_and_b32 v%d, 15, v%d" % (t9, vLANE))
    A("v_lshlrev_b32 v%d, 4, v%d" % (t9, t9))
    A("v_lshl_add_u32 v%d, v%d, 13, v%d" % (aWO, t8, t9))
    A("v_add_u32 v%d, s%d, v%d" % (aWO, sT0, aWO))
    A("s_mul_i32 s%d, s%d, 28" % (sT0, sHH))
    A("s_min_u32 s%d, s%d, 6" % (sT2, sW))
    A("s_lshl_b32 s%d, s%d, 2" % (sT2, sT2))
    A("s_add_u32 s%d, s%d, s%d" % (sT0, sT0, sT2))
    A("s_lshl_b32 s%d, s%d, 10" % (sT2, sT0))
    A("s_add_u32 s%d, s%d, s%d" % (sT2, sT2, sT1))
    A("v_lshl_add_u32 v%d, v%d, 10, v%d" % (aWD, t8, t9))
    A("v_add_u32 v%d, s%d, v%d" % (aWD, sT2, aWD))
    A("v_add_u32 v%d, s%d, v%d" % (t9, sT0, t8))
    A("v_lshrrev_b32 v%d, 6, v%d" % (aH, t9))
    A("v_lshlrev_b32 v%d, 11, v%d" % (aH, aH))
    A("v_and_b32 v%d, 63, v%d" % (t9, t9))
    A("v_lshl_add_u32 v%d, v%d, 2, v%d" % (aH, t9, aH))
    A("v_and_b32 v%d, 7, v%d" % (t9, vLANE))
    A("v_lshl_add_u32 v%d, v%d, 8, v%d" % (aH, t9, aH))
    A("v_add_u32 v%d, 0x%x, v%d" % (aH, FPOFF, aH))
    vissue(1)
    A("v_lshrrev_b32 v%d, 1, v%d" % (aML, vLANE))
    A("v_lshlrev_b32 v%d, 4, v%d" % (aML, aML))
    A("s_lshr_b32 s%d, s%d, 1" % (sT0, sHH))
    A("s_lshl_b32 s%d, s%d, 9" % (sT0, sT0))
    A("s_add_u32 s%d, s%d, 0x%x" % (sT0, sT0, MLOFF))
    A("v_add_u32 v%d, s%d, v%d" % (aML, sT0, aML))
    A("s_lshl_b32 s%d, s%d, 3" % (sT0, sHH))
    A("s_add_u32 s%d, s%d, s%d" % (sT0, sT0, sW))
    A("s_lshl_b32 s%d, s%d, 10" % (sT0, sT0))
    A("s_add_u32 s%d, s%d, 0x%x" % (sT0, sT0, P3OFF))
    A("v_add_u32 v%d, s%d, v%d" % (aP3, sT0, vL16))
    A("v_and_b32 v%d, 3, v%d" % (aLO, vLANE))
    A("v_lshlrev_b32 v%d, 9, v%d" % (aLO, aLO))
    A("v_lshl_add_u32 v%d, v%d, 6, v%d" % (aLO, t8, aLO))
    A("v_bfe_u32 v%d, v%d, 2, 2" % (t9, vLANE))
    A("v_lshl_add_u32 v%d, v%d, 4, v%d" % (aLO, t9, aLO))
    A("v_and_b32 v%d, 3, v%d" % (aQ, vLANE))
    A("v_lshlrev_b32 v%d, 8, v%d" % (aQ, aQ))
    A("v_lshl_add_u32 v%d, v%d, 6, v%d" % (aQ, t8, aQ))
    A("v_lshl_add_u32 v%d, v%d, 4, v%d" % (aQ, t9, aQ))
    A("s_lshl_b32 s%d, s%d, 11" % (sT0, sW))
    A("v_add_u32 v%d, s%d, v%d" % (aLO, sT0, aLO))
    A("s_and_b32 s%d, s2, 127" % sT0)
    A("s_lshr_b32 s%d, s%d, 3" % (sT1, sT0))
    A("s_lshl_b32 s%d, s%d, 5" % (sT1, sT1))
    A("s_and_b32 s%d, s%d, 7" % (sT0, sT0))
    A("s_add_u32 s%d, s%d, s%d" % (sT0, sT0, sT1))
    A("v_lshlrev_b32 v%d, 3, v%d" % (aXF, t8))
    A("v_add_u32 v%d, s%d, v%d" % (aXF, sT0, aXF))
    A("v_lshlrev_b32 v%d, 1, v%d" % (aXF, aXF))
    vissue(cfg.nvb - vnext[0])
    lds_wait("qw", F_Q, 1, t8)
    A("ds_read_b128 %s, v%d offset:%d" % (v4(vQ), aQ, L_Q))
    A.wait_if("K31")
    A("s_waitcnt lgkmcnt(0)")
    stamp(10)
    def qk(t): A("v_mfma_f32_16x16x32_bf16 %s, %s, %s, 0" % (v4(kslot(t)), v4(kslot(t)), v4(vQ)))
    def extr(a, r, k):
        d = kslot(4 * k + a) + r
        rot = (4 * (a - r)) % 16
        ctl = "row_ror:%d" % rot if rot else "quad_perm:[0,1,2,3]"
        if r == 0: A("v_mov_b32_dpp v%d, v%d %s row_mask:0xf bank_mask:0x%x" % (vR + k, d, ctl, 1 << a))
        else: A("v_add_f32_dpp v%d, v%d, v%d %s row_mask:0xf bank_mask:0x%x" % (vR + k, d, vR + k, ctl, 1 << a))
    for k in range(8): qk(4 * k)
    w2 = cfg.w2_flags
    for a in range(4):
        for r in range(4):
            for k in range(8):
                extr(a, r, k)
                if a < 3 and k % 4 == 3: qk(4 * (2 * r + k // 4) + a + 1)
            if r % 2 == 1: vissue(1)
    A("global_load_dwordx4 %s, v%d, %s %s" % (v4(vWO0), aWO, sp(sWO), w2), tag="wo"); seq.append("wo")
    for i in range(4):
        a, b = vR + 2 * i, vR + 2 * i + 1
        t = t8 + (i & 1)
        A("v_cvt_pk_bf16_f32 v%d, v%d, v%d" % (t, a, b))
        unpack(a, b, t)
        A("v_mul_f32 v%d, s%d, v%d" % (a, sSCL, a)); A("v_mul_f32 v%d, s%d, v%d" % (b, sSCL, b))
        A("v_cvt_pk_bf16_f32 v%d, v%d, v%d" % (t, a, b))
        unpack(a, b, t)
    A.wait_if(seq[len(seq) - cfg.DV])
    A("global_load_dwordx4 %s, v%d, %s offset:1024 %s" % (v4(vWO1), aWO, sp(sWO), w2), tag="wo1"); seq.append("wo1")
    vMx, vL, vTm, vNm = vS[0], vS[0] + 1, vS[0] + 2, vS[0] + 3
    A("v_max3_f32 v%d, v%d, v%d, v%d" % (vMx, vR, vR + 1, vR + 2))
    A("v_max3_f32 v%d, v%d, v%d, v%d" % (vTm, vR + 3, vR + 4, vR + 5))
    A("v_max3_f32 v%d, v%d, v%d, v%d" % (vMx, vMx, vR + 6, vR + 7))
    A("v_max_f32 v%d, v%d, v%d" % (vMx, vMx, vTm))
    allred("v_max_f32", vMx, vTm, rors=(8, 4))
    A("v_mul_f32 v%d, s%d, v%d" % (vNm, sC, vMx))
    for k in range(8): A("v_fma_f32 v%d, v%d, s%d, -v%d" % (vR + k, vR + k, sC, vNm))
    for k in range(8): A("v_exp_f32 v%d, v%d" % (vR + k, vR + k))
    A.wait_if(seq[len(seq) - cfg.DV])
    A("global_load_dwordx4 %s, v%d, %s %s" % (v4(vWD), aWD, sp(sWD), w2), tag="wd"); seq.append("wd")
    A("v_add_f32 v%d, v%d, v%d" % (vL, vR, vR + 1))
    A("v_add_f32 v%d, v%d, v%d" % (vTm, vR + 2, vR + 3))
    for k in range(4, 8, 2):
        A("v_add_f32 v%d, v%d, v%d" % (vL, vL, vR + k)); A("v_add_f32 v%d, v%d, v%d" % (vTm, vTm, vR + k + 1))
    A("v_add_f32 v%d, v%d, v%d" % (vL, vL, vTm))
    for k in range(8): A("v_cvt_pk_bf16_f32 v%d, v%d, v%d" % (vR + k, vR + k, vR + k))
    allred("v_add_f32", vL, vTm, rors=(8, 4))
    A("v_lshlrev_b32 v%d, 6, v%d" % (vTm, vLANE))
    A("s_lshl_b32 s%d, s%d, 3" % (sT0, sW))
    A("v_add_u32 v%d, s%d, v%d" % (vTm, sT0, vTm))
    A("v_mov_b32 v%d, 1" % vNm)
    A("s_mov_b64 exec, 0xf")
    A("ds_write_b64 v%d, %s offset:%d" % (vTm, v2(vMx), L_ML))
    A("s_mov_b64 exec, 1")
    A("ds_add_rtn_u32 v%d, v%d, v%d offset:%d" % (vNm, vZ, vNm, F_CNT))
    exec_all()
    stamp(11)
    vissue(1)
    A("s_waitcnt lgkmcnt(0)")
    A("v_readfirstlane_b32 s%d, v%d" % (sT0, vNm))
    A("s_cmp_eq_u32 s%d, 7" % sT0)
    A("s_cbranch_scc0 L_noml")
    A("v_and_b32 v%d, 3, v%d" % (vTm, vLANE))
    A("v_lshlrev_b32 v%d, 6, v%d" % (vNm, vTm))
    q = [vS[1], vS[2], vS[3], vP]
    for k in range(4): A("ds_read_b128 %s, v%d offset:%d" % (v4(q[k]), vNm, L_ML + 16 * k))
    ml_pub_addr(t8, vTm)
    A("v_lshlrev_b32 v%d, 5, v%d" % (t9, vTm))
    A("s_waitcnt lgkmcnt(0)")
    mm = [q[k >> 1] + 2 * (k & 1) for k in range(8)]
    ff = [vF0 + k for k in range(4)] + [vF1 + k for k in range(4)]
    A("v_max3_f32 v%d, v%d, v%d, v%d" % (vMx, mm[0], mm[1], mm[2]))
    A("v_max3_f32 v%d, v%d, v%d, v%d" % (vMx, vMx, mm[3], mm[4]))
    A("v_max3_f32 v%d, v%d, v%d, v%d" % (vMx, vMx, mm[5], mm[6]))
    A("v_max_f32 v%d, v%d, v%d" % (vMx, vMx, mm[7]))
    for k in range(8): A("v_sub_f32 v%d, v%d, v%d" % (ff[k], mm[k], vMx))
    for k in range(8): A("v_mul_f32 v%d, s%d, v%d" % (ff[k], sC, ff[k]))
    for k in range(8): A("v_exp_f32 v%d, v%d" % (ff[k], ff[k]))
    A("v_mul_f32 v%d, v%d, v%d" % (vL, ff[0], mm[0] + 1))
    for k in range(1, 8): A("v_fmac_f32 v%d, v%d, v%d" % (vL, ff[k], mm[k] + 1))
    settag(vMx); settag(vL)
    A("v_mov_b32 v%d, s%d" % (vTm, sTAG)); A("v_mov_b32 v%d, s%d" % (vNm, sTAG))
    A("s_mov_b64 exec, 0xf")
    A("global_store_dwordx4 v%d, %s, %s sc1" % (t8, v4(vMx), sp(sWS)), count=False)
    A("ds_write_b128 v%d, %s offset:%d" % (t9, v4(vF0), L_F))
    A("ds_write_b128 v%d, %s offset:%d" % (t9, v4(vF1), L_F + 16))
    exec_all()
    A.label("L_noml")
    A.fence(2)
    stamp(12)
    def prepx(m, e2):
        x = vX + 4 * (m & 1)
        a = m & 3
        rot = (4 * (e2 - a)) % 16
        ctl = "row_ror:%d" % rot if rot else "quad_perm:[0,1,2,3]"
        A("v_and_b32_dpp v%d, v%d, v%d %s row_mask:0xf bank_mask:0x%x" % (x + 2 + (e2 >> 1), vR + (m >> 2), vHM, ctl, 1 << e2))
    def side_work():
        A.wait_if("xf")
        A("s_mov_b32 s%d, 0" % sCNT)
        A.label("L_mlchk")
        badtag([vML, vML + 1, vH], t8, t9, extra=vML + 2)
        A("s_cbranch_vccz L_mlok")
        spin_guard("L_mlok")
        A("s_sleep 1")
        A("global_load_dwordx4 %s, v%d, %s sc1" % (v4(vML), aML, sp(sWS)), count=False)
        A("global_load_dword v%d, v%d, %s sc1" % (vH, aH, sp(sWS)), count=False)
        A("s_waitcnt vmcnt(0)")
        A("s_branch L_mlchk")
        A.label("L_mlok")
        g_, u_, a_, b_ = vS[1], vS[1] + 1, vS[1] + 2, vS[1] + 3
        A("v_add_f32_dpp v%d, v%d, v%d quad_perm:[1,0,3,2] row_mask:0xf bank_mask:0xf" % (vH, vH, vH))
        A("v_and_b32 v%d, s%d, v%d" % (vML, sNM, vML))
        A("v_mov_b32 v%d, v%d" % (vWT, vML))
        A("v_add_f32_dpp v%d, v%d, v%d quad_perm:[2,3,0,1] row_mask:0xf bank_mask:0xf" % (vH, vH, vH))
        dpp("v_max_f32", vWT, 8)
        A("v_mov_b32 v%d, v%d" % (g_, vH)); A("v_mov_b32 v%d, v%d" % (u_, vH))
        dpp("v_max_f32", vWT, 4)
        A("v_mov_b32_dpp v%d, v%d row_ror:4 row_mask:0xf bank_mask:0xa" % (g_, vH))
        A("v_mov_b32_dpp v%d, v%d row_ror:4 row_mask:0xf bank_mask:0x5" % (u_, vH))
        dpp("v_max_f32", vWT, 2)
        rnd(g_, a_); rnd(u_, b_)
        xrows("v_max_f32", vWT, vWT + 1)
        c1 = -2.0 * 1.4426950408889634 * 0.7978845608028654
        c2 = c1 * 0.044715
        A("v_mul_f32 v%d, v%d, v%d" % (a_, g_, g_))
        A("v_mov_b32 v%d, 0x%08x" % (b_, f2u(c1)))
        A("v_fmac_f32 v%d, 0x%08x, v%d" % (b_, f2u(c2), a_))
        A("v_sub_f32 v%d, v%d, v%d" % (vWT, vML, vWT))
        A("v_mul_f32 v%d, v%d, v%d" % (b_, b_, g_))
        A("v_mul_f32 v%d, s%d, v%d" % (vWT, sC, vWT))
        A("v_exp_f32 v%d, v%d" % (b_, b_))
        A("v_exp_f32 v%d, v%d" % (vWT, vWT))
        A("v_add_f32 v%d, 1.0, v%d" % (b_, b_))
        A("v_mul_f32 v%d, v%d, v%d" % (vWT + 2, vWT, vML + 1))
        A("v_rcp_f32 v%d, v%d" % (b_, b_))
        dpp("v_add_f32", vWT + 2, 8)
        A("v_mul_f32 v%d, v%d, v%d" % (g_, g_, b_))
        rnd(g_, a_)
        dpp("v_add_f32", vWT + 2, 4)
        A("v_mul_f32 v%d, v%d, v%d" % (g_, g_, u_))
        A("v_cvt_pk_bf16_f32 v%d, v%d, v%d" % (g_, g_, g_))
        dpp("v_add_f32", vWT + 2, 2)
        A("s_cmp_lt_u32 s%d, 7" % sW)
        A("s_cselect_b32 s%d, -1, 0" % sT0)
        A("v_and_b32 v%d, s%d, v%d" % (g_, sT0, g_))
        for k in range(4): A("v_and_b32 v%d, v%d, v%d" % (vB + k, g_, vMK + 4 + k))
        xrows("v_add_f32", vWT + 2, vWT + 1)
        A("v_mfma_f32_16x16x32_bf16 %s, %s, %s, 0" % (v4(vD), v4(vWD), v4(vB)))
        A("v_rcp_f32 v%d, v%d" % (vWT + 2, vWT + 2))
        A("v_mul_f32 v%d, v%d, v%d" % (vWT, vWT, vWT + 2))
    for e2 in (0, 2, 1, 3): prepx(0, e2)
    side_done = False
    mlat = cfg.mlat if cfg.mlat >= 0 else 31 - 2 * cfg.DV
    for m in range(32):
        x = vX + 4 * (m & 1)
        if m == mlat:
            A("global_load_dwordx4 %s, v%d, %s sc1" % (v4(vML), aML, sp(sWS)), tag="ml")
            A("global_load_dword v%d, v%d, %s sc1" % (vH, aH, sp(sWS)), tag="h")
            A("global_load_ushort v%d, v%d, %s" % (vXF, aXF, sp(sX)), tag="xf")
        A.wait_if("V%d" % m)
        while vnext[0] < 32 and vnext[0] <= m + cfg.DV: vissue(1)
        if m > mlat and "xf" not in A.vm and not side_done:
            side_work(); side_done = True
        if m < 31: prepx(m + 1, 0); prepx(m + 1, 2)
        A("v_mfma_f32_16x16x32_bf16 %s, %s, %s, %s" % (v4(vACC), v4(vslot(m)), v4(x + 2), "0" if m == 0 else v4(vACC)))
        if m < 31: prepx(m + 1, 1); prepx(m + 1, 3)
        A("v_mfma_f32_16x16x32_bf16 %s, %s, %s, %s" % (v4(vACC + 4), v4(vslot(m)), v4(x), "0" if m == 0 else v4(vACC + 4)))
    assert side_done
    stamp(13)
    A("ds_write_b128 v%d, %s offset:%d" % (aLO, v4(vACC), L_OP))
    A("ds_write_b128 v%d, %s offset:%d" % (aLO, v4(vACC + 4), L_OP + 256))
    A("s_lshl_b32 s%d, s%d, 10" % (sT0, sW))
    A("v_add_u32 v%d, s%d, v%d" % (t8, sT0, vL16))
    A("v_lshrrev_b32 v%d, 9, v%d" % (t9, t8))
    A("v_lshlrev_b32 v%d, 5, v%d" % (t9, t9))
    A("s_waitcnt lgkmcnt(0)")
    A("s_barrier")
    A("s_cmp_gt_u32 s%d, 1" % sW)
    A("s_cbranch_scc1 L_nop3")
    rr = vVI
    A("ds_read_b128 %s, v%d offset:%d" % (v4(vF0), t9, L_F))
    A("ds_read_b128 %s, v%d offset:%d" % (v4(vF1), t9, L_F + 16))
    for k in range(8): A("ds_read_b128 %s, v%d offset:%d" % (v4(rr + 4 * k), t8, L_OP + 2048 * k))
    A("s_lshl_b32 s%d, s%d, 15" % (sT0, sW))
    A("v_add_u32 v%d, s%d, v%d" % (vA0, sT0, vA0))
    for k in range(8):
        A("s_waitcnt lgkmcnt(%d)" % (7 - k))
        for c in range(4):
            if k == 0: A("v_mul_f32 v%d, v%d, v%d" % (rr + c, rr + c, ff[0]))
            else: A("v_fmac_f32 v%d, v%d, v%d" % (rr + c, rr + 4 * k + c, ff[k]))
    for c in range(4): settag(rr + c)
    A("global_store_dwordx4 v%d, %s, %s sc1" % (vA0, v4(rr), sp(sWS)), count=False)
    A.label("L_nop3")
    A.fence(2)
    stamp(14)
    A("s_mov_b32 s%d, 0" % sCNT)
    A.label("L_p3chk")
    A("global_load_dwordx4 %s, v%d, %s sc1" % (v4(vP), aP3, sp(sWS)), count=False)
    A("s_waitcnt vmcnt(0)")
    badtag(range(vP, vP + 4), t8, t9)
    A("s_cbranch_vccz L_p3ok")
    spin_guard("L_p3ok")
    A("s_branch L_p3chk")
    A.label("L_p3ok")
    stamp(15)
    for c in range(4): A("v_mul_f32 v%d, v%d, v%d" % (vP + c, vP + c, vWT))
    def rs4(p, rors):
        A("v_permlane32_swap_b32 v%d, v%d" % (p, p + 2))
        A("v_permlane32_swap_b32 v%d, v%d" % (p + 1, p + 3))
        A("v_add_f32 v%d, v%d, v%d" % (p, p, p + 2))
        A("v_add_f32 v%d, v%d, v%d" % (p + 1, p + 1, p + 3))
        A("v_permlane16_swap_b32 v%d, v%d" % (p, p + 1))
        A("v_add_f32 v%d, v%d, v%d" % (p, p, p + 1))
        for n in rors: dpp("v_add_f32", p, n)
    rs4(vP, (8, 4, 2))
    A("v_cvt_pk_bf16_f32 v%d, v%d, v%d" % (vP, vP, vP))
    for k in range(4):
        A("v_and_b32_dpp v%d, v%d, v%d quad_perm:[0,0,2,2] row_mask:0xf bank_mask:0xf" % (vB + k, vP, vMK + k))
    for k in range(4):
        A("v_and_b32_dpp v%d, v%d, v%d quad_perm:[1,1,3,3] row_mask:0xf bank_mask:0xf" % (vB2 + k, vP, vMK + k))
    A("v_mfma_f32_16x16x32_bf16 %s, %s, %s, %s" % (v4(vD), v4(vWO0), v4(vB), v4(vD)))
    A("v_mfma_f32_16x16x32_bf16 %s, %s, %s, %s" % (v4(vD), v4(vWO1), v4(vB2), v4(vD)))
    A("s_lshl_b32 s%d, s%d, 10" % (sT0, sW))
    A("v_add_u32 v%d, s%d, v%d" % (t8, sT0, vL16))
    A("ds_write_b128 v%d, %s offset:%d" % (t8, v4(vD), L_SP))
    A("s_waitcnt lgkmcnt(0)")
    A("s_barrier")
    A("s_cmp_lg_u32 s%d, 0" % sW)
    A("s_cbranch_scc1 L_end2")
    for k in range(8): A("ds_read_b128 %s, v%d offset:%d" % (v4(rr + 4 * k), vL16, L_SP + 1024 * k))
    for k in range(1, 8):
        A("s_waitcnt lgkmcnt(%d)" % (7 - k))
        for c in range(4): A("v_add_f32 v%d, v%d, v%d" % (rr + c, rr + c, rr + 4 * k + c))
    for c in range(4): settag(rr + c)
    A("global_store_dwordx4 v%d, %s, %s sc1" % (vA1, v4(rr), sp(sWS)), count=False)
    stamp(16)
    A("s_cmp_ge_u32 s2, 128")
    A("s_cbranch_scc1 L_end2")
    A("s_lshl_b32 s%d, s2, 10" % sT0)
    A("s_add_u32 s%d, s%d, 0x%x" % (sT0, sT0, P4OFF))
    A("v_add_u32 v%d, s%d, v%d" % (vT, sT0, vL16))
    A("v_add_u32 v%d, 0x20000, v%d" % (vT + 1, vT))
    A("s_mov_b32 s%d, 0" % sCNT)
    A.label("L_p4poll")
    A("global_load_dwordx4 %s, v%d, %s sc1" % (v4(vP), vT, sp(sWS)), count=False)
    A("global_load_dwordx4 %s, v%d, %s sc1" % (v4(vPY), vT + 1, sp(sWS)), count=False)
    A("s_waitcnt vmcnt(0)")
    badtag(list(range(vP, vP + 4)) + list(range(vPY, vPY + 4)), t8, t9)
    A("s_cbranch_vccz L_p4ok")
    A("s_add_u32 s%d, s%d, 1" % (sCNT, sCNT))
    A("s_cmp_gt_u32 s%d, %d" % (sCNT, cfg.spin_max))
    A("s_cbranch_scc0 L_p4poll")
    A.label("L_p4ok")
    stamp(17)
    p, y = vP, vPY
    for r in (p, y):
        A("v_permlane32_swap_b32 v%d, v%d" % (r, r + 2))
        A("v_permlane32_swap_b32 v%d, v%d" % (r + 1, r + 3))
    for r in (p, y):
        A("v_add_f32 v%d, v%d, v%d" % (r, r, r + 2))
        A("v_add_f32 v%d, v%d, v%d" % (r + 1, r + 1, r + 3))
    for r in (p, y): A("v_permlane16_swap_b32 v%d, v%d" % (r, r + 1))
    for r in (p, y): A("v_add_f32 v%d, v%d, v%d" % (r, r, r + 1))
    for n in (8, 4, 2, 1):
        for r in (p, y): dpp("v_add_f32", r, n)
    rnd(y, y + 1); rnd(p, p + 1)
    A("v_mul_f32 v%d, s%d, v%d" % (y + 2, sC, y))
    A("v_exp_f32 v%d, -v%d" % (y + 2, y + 2))
    A("v_add_f32 v%d, 1.0, v%d" % (y + 2, y + 2))
    A("v_rcp_f32 v%d, v%d" % (y + 2, y + 2))
    A("v_mul_f32 v%d, v%d, v%d" % (y, y, y + 2))
    rnd(y, y + 1)
    A("v_mul_f32 v%d, v%d, v%d" % (p, p, y))
    rnd(p, p + 1)
    A("v_lshlrev_b32 v%d, 16, v%d" % (vXF, vXF))
    A("v_add_f32 v%d, v%d, v%d" % (p, p, vXF))
    A("v_cvt_pk_bf16_f32 v%d, v%d, v%d" % (p, p, p))
    A("s_mov_b32 exec_lo, 0x00010001"); A("s_mov_b32 exec_hi, 0x00010001")
    A("global_store_short v%d, v%d, %s" % (aXF, p, sp(sOUT)), count=False)
    A("s_cmp_lg_u32 s2, 0")
    A("s_cbranch_scc1 L_end2")
    A("s_mov_b64 exec, 1")
    A("v_mov_b32 v%d, 0x%x" % (t8, EPOFF))
    A("v_mov_b32 v%d, s%d" % (t9, sTAG))
    A("global_store_dword v%d, v%d, %s sc1" % (t8, t9, sp(sWS)), count=False)
    A.label("L_end2")
    if cfg.stamps:
        stamp(NST - 1)
        exec_all()
        A("s_waitcnt lgkmcnt(0)")
        A("s_lshl_b32 s%d, s2, 3" % sT0)
        A("s_add_u32 s%d, s%d, s%d" % (sT0, sT0, sW))
        A("s_lshl_b32 s%d, s%d, 8" % (sT0, sT0))
        A("s_add_u32 s%d, s%d, 0x200000" % (sT0, sT0))
        A("v_mov_b32 v%d, s%d" % (vT, sT0))
        A("s_mov_b64 exec, 1")
        for k in range(NST):
            A("v_mov_b32 v%d, s%d" % (vT + 4, 60 + 2 * k)); A("v_mov_b32 v%d, s%d" % (vT + 5, 61 + 2 * k))
            A("global_store_dwordx2 v%d, %s, %s offset:%d" % (vT, v2(vT + 4), sp(sWS), 8 * k), count=False)
            A("s_nop 1")
        if cfg.probe >= 0:
            A("s_cmp_lg_u32 s%d, 0" % sW)
            A("s_cbranch_scc1 L_end")
            A("s_sub_u32 s%d, s%d, s60" % (sT0, 60 + 2 * cfg.probe))
            A("s_min_u32 s%d, s%d, 20000" % (sT0, sT0))
            A("s_mul_i32 s%d, s%d, 10" % (sT0, sT0))
            A("s_add_u32 s%d, s%d, s%d" % (sT0, sT0, 60 + 2 * (NST - 1)))
            A.label("L_probe")
            A("s_memrealtime s[56:57]")
            A("s_waitcnt lgkmcnt(0)")
            A("s_sub_u32 s%d, s%d, s56" % (sT1, sT0))
            A("s_cmp_gt_i32 s%d, 0" % sT1)
            A("s_cbranch_scc1 L_probe")
    A.label("L_end")
    return A

HEADER = open("cdna_kernels/%s.s.ref" % NAME).read().split("; Override launch geometry")[0]

def build(cfg, path):
    A = gen(cfg)
    s = HEADER
    s += "; @launch grid=(256,1,1) block=(512,1,1) lds=%d\n" % L_END
    s += '.amdgcn_target "amdgcn-amd-amdhsa--gfx950"\n.text\n.globl %s_kernel\n.p2align 8\n.type %s_kernel,@function\n%s_kernel:\n' % (NAME, NAME, NAME)
    s += A.text()
    s += "s_endpgm\n"
    s += """.section .rodata,"a"
.p2align 6
.amdhsa_kernel %s_kernel
  .amdhsa_next_free_vgpr 256
  .amdhsa_next_free_sgpr 102
  .amdhsa_accum_offset 256
  .amdhsa_group_segment_fixed_size 0
  .amdhsa_kernarg_size 96
  .amdhsa_user_sgpr_count 2
  .amdhsa_user_sgpr_kernarg_segment_ptr 1
  .amdhsa_system_sgpr_workgroup_id_x 1
.end_amdhsa_kernel
""" % NAME
    open(path, "w").write(s)
    return A

if __name__ == "__main__":
    cfg = Cfg()
    out = "cdna_kernels/%s.s" % NAME
    for a in sys.argv[1:]:
        k, v = a.split("=", 1)
        if k == "out": out = v; continue
        cur = getattr(cfg, k)
        setattr(cfg, k, type(cur)(int(v)) if isinstance(cur, (bool, int)) else v)
    A = build(cfg, out)
    print("wrote", out, "lines", len(A.out), "auto nops", A.nops_added)
```

```python
import sys, struct
from emit import Asm

NAME = "recurrent_scan__gqa_block_cached__glu_gated_geglu__decode"
def f2u(x): return struct.unpack("<I", struct.pack("<f", x))[0]

class Cfg:
    kv_flags = "nt"
    w_flags = "nt"
    w2_flags = "nt"
    D = 4
    DV = 4
    D1 = 6
    D0 = 8
    nvb = 6
    mlat = -1
    slp3 = 0
    prio = 3
    spin_max = 1 << 17
    stamps = False
    probe = -1
    probewg = -1

QPOFF = 0x0
FPOFF = 0x10000
MLOFF = 0x20000
EPOFF = 0x30000
P3OFF = 0x40000
P4OFF = 0x100000
L_FL, L_F, L_Q, L_ML, L_OP, L_SP, L_END = 0, 256, 1024, 512, 2048, 18432, 26624
F_Q, F_CNT = L_FL + 4, L_FL + 8

def gen(cfg):
    A = Asm()
    sX, sK, sV, sWQ, sWO, sWG, sWU, sWD, sOUT, sDBG, sWS = 4, 6, 8, 10, 12, 16, 18, 20, 22, 24, 26
    def sp(r): return "s[%d:%d]" % (r, r + 1)
    def v4(r): return "v[%d:%d]" % (r, r + 3)
    def v2(r): return "v[%d:%d]" % (r, r + 1)
    sW, sG, sSP, sKO, sVO = 3, 36, 37, 38, 39
    sT0, sT1, sT2, sT3 = 40, 41, 42, 43
    sHI, sC, sSCL, sCNT, sNM = 44, 45, 46, 48, 49
    sTAG, sTAG8, sFF = 14, 15, 59
    sJ, sCB, sHH, sSTR, sPUB, sQD = 50, 51, 47, 56, 57, 58
    vLANE, vKO, vL16, vHM, vZ = 1, 2, 3, 4, 5
    vMK = 6
    vA0, vA1 = 14, 15
    vQ = 16
    vR = 20
    vACC = 28
    vX = 36
    vT = 46
    vVI = 56
    vKS = 128
    NVI = 18
    def kslot(i): return vKS + 4 * i
    qk_order = [4 * k + a for a in range(4) for k in range(8)]
    def vslot(m): return vVI + 4 * m if m < NVI else kslot(qk_order[m - NVI])
    fr = [kslot(t) for t in qk_order[14:]]
    vWO0, vWO1, vWD, vML, vP, vPY, vD, vB, vB2, vWT, vF0, vF1 = fr[:12]
    vS = [fr[12], fr[13], fr[14], fr[15]]
    vH = fr[16]
    vXF = fr[16] + 1
    vTG = 0

    def rnd(v, t):
        A("v_cvt_pk_bf16_f32 v%d, v%d, v%d" % (t, v, v))
        A("v_lshlrev_b32 v%d, 16, v%d" % (v, t))
    def dpp(op, v, n):
        A("%s_dpp v%d, v%d, v%d row_ror:%d row_mask:0xf bank_mask:0xf" % (op, v, v, v, n))
    def xrows(op, v, t):
        A("v_mov_b32 v%d, v%d" % (t, v))
        A("v_permlane16_swap_b32 v%d, v%d" % (t, v))
        A("%s v%d, v%d, v%d" % (op, v, t, v))
        A("v_mov_b32 v%d, v%d" % (t, v))
        A("v_permlane32_swap_b32 v%d, v%d" % (t, v))
        A("%s v%d, v%d, v%d" % (op, v, t, v))
    def allred(op, v, t, rors=(8, 4, 2, 1)):
        for n in rors: dpp(op, v, n)
        xrows(op, v, t)
    def unpack(dst_lo, dst_hi, src):
        A("v_lshlrev_b32 v%d, 16, v%d" % (dst_lo, src))
        A("v_and_b32 v%d, s%d, v%d" % (dst_hi, sHI, src))
    def exec_all(): A("s_mov_b64 exec, -1")
    NST = 20
    def stamp(k):
        if cfg.stamps: A("s_memrealtime s[%d:%d]" % (60 + 2 * k, 61 + 2 * k))
    def cntstamp(k):
        if cfg.stamps:
            A("s_mul_i32 s%d, s%d, 100" % (sT3, sCNT))
            A("s_add_u32 s%d, s60, s%d" % (60 + 2 * k, sT3))
            A("s_addc_u32 s%d, s61, 0" % (61 + 2 * k))
    def badtag(regs, t, t2, extra=None):
        regs = list(regs)
        if len(regs) % 2: regs.append(regs[-1])
        prs = [(regs[i], regs[i + 1]) for i in range(0, len(regs), 2)]
        A("v_bitop3_b32 v%d, v%d, v%d, s%d bitop3:0x7e" % (t, prs[0][0], prs[0][1], sTAG8))
        for k, (a, b) in enumerate(prs[1:]):
            A("v_bitop3_b32 v%d, v%d, v%d, s%d bitop3:0x7e" % (t2, a, b, sTAG8))
            if k < len(prs) - 2: A("v_or_b32 v%d, v%d, v%d" % (t, t, t2))
        A("v_bitop3_b32 v%d, v%d, v%d, s%d bitop3:0xa8" % (t, t, t2 if len(prs) > 1 else t, sFF))
        if extra is not None:
            A("v_xor_b32 v%d, s%d, v%d" % (t2, sTAG, extra))
            A("v_or_b32 v%d, v%d, v%d" % (t, t, t2))
        A("v_cmp_ne_u32 vcc, 0, v%d" % t)
    def settag(r): A("v_and_or_b32 v%d, v%d, s%d, v%d" % (r, r, sNM, vTG))
    def tags():
        A("s_add_u32 s%d, s%d, 1" % (sTAG, sTAG))
        A("s_and_b32 s%d, s%d, 0xff" % (sTAG8, sTAG))
        A("v_mov_b32 v%d, s%d" % (vTG, sTAG8))
    def spin_guard(lbl_ok):
        A("s_add_u32 s%d, s%d, 1" % (sCNT, sCNT))
        A("s_cmp_gt_u32 s%d, %d" % (sCNT, cfg.spin_max))
        A("s_cbranch_scc1 %s" % lbl_ok)
    def lds_wait(name, off, val, t):
        A("s_mov_b32 s%d, 0" % sCNT)
        A.label("L_%s" % name)
        A("ds_read_b32 v%d, v%d offset:%d" % (t, vZ, off))
        A("s_waitcnt lgkmcnt(0)")
        A("v_readfirstlane_b32 s%d, v%d" % (sT0, t))
        A("s_cmp_eq_u32 s%d, %d" % (sT0, val))
        A("s_cbranch_scc1 L_%s_ok" % name)
        A("s_add_u32 s%d, s%d, 1" % (sCNT, sCNT))
        A("s_cmp_gt_u32 s%d, %d" % (sCNT, cfg.spin_max * 16))
        A("s_cbranch_scc1 L_%s_ok" % name)
        A("s_sleep 1")
        A("s_branch L_%s" % name)
        A.label("L_%s_ok" % name)

    A("s_cmp_ge_u32 s2, 256")
    A("s_cbranch_scc1 L_end")
    A("s_load_dwordx16 s[4:19], s[0:1], 0")
    A("s_load_dwordx8 s[20:27], s[0:1], 64")
    if cfg.stamps:
        for k in range(1, NST): A("s_mov_b64 s[%d:%d], 0" % (60 + 2 * k, 61 + 2 * k))
    stamp(0)
    A("v_mov_b32 v%d, 0" % vZ)
    for k in range(10): A("v_mov_b32 v%d, 0" % (vX + k))
    A("v_and_b32 v%d, 63, v0" % vLANE)
    A("v_lshrrev_b32 v%d, 6, v0" % vA0)
    A("ds_write_b128 v%d, %s offset:%d" % (vZ, v4(vX), L_FL))
    A("v_lshlrev_b32 v%d, 4, v%d" % (vL16, vLANE))
    A("v_readfirstlane_b32 s%d, v%d" % (sW, vA0))
    A("v_bfe_u32 v%d, v%d, 2, 2" % (vA1, vLANE))
    A("v_lshlrev_b32 v%d, 8, v%d" % (vKO, vA1))
    A("v_lshrrev_b32 v%d, 4, v%d" % (vA1, vLANE))
    A("v_lshl_add_u32 v%d, v%d, 6, v%d" % (vKO, vA1, vKO))
    A("v_and_b32 v%d, 3, v%d" % (vA1, vLANE))
    A("v_lshl_add_u32 v%d, v%d, 4, v%d" % (vKO, vA1, vKO))
    A("s_and_b32 s%d, s2, 7" % sG)
    A("s_lshr_b32 s%d, s2, 3" % sSP)
    A("s_lshl_b32 s%d, s%d, 23" % (sKO, sG))
    A("s_lshl_b32 s%d, s%d, 18" % (sT0, sSP))
    A("s_add_u32 s%d, s%d, s%d" % (sKO, sKO, sT0))
    A("s_lshl_b32 s%d, s%d, 12" % (sT0, sW)); step = 32768
    A("s_add_u32 s%d, s%d, s%d" % (sKO, sKO, sT0))
    A("s_mov_b32 s%d, s%d" % (sVO, sKO))
    A("s_mov_b32 s30, 0x4000000"); A("s_mov_b32 s31, 0x20000")
    A("s_mov_b32 s34, 0x4000000"); A("s_mov_b32 s35, 0x20000")
    A("s_mov_b32 s%d, 0xffff0000" % sHI)
    A("s_mov_b32 s%d, 0xffffff00" % sNM)
    A("s_movk_i32 s%d, 0xff" % sFF)
    A("s_lshr_b32 s%d, s%d, 2" % (sJ, sSP))
    A("s_and_b32 s%d, s%d, 3" % (sCB, sSP))
    A("s_lshl_b32 s%d, s%d, 3" % (sHH, sG))
    A("s_add_u32 s%d, s%d, s%d" % (sHH, sHH, sJ))
    A("s_cmp_lt_u32 s%d, 2" % sW)
    A("s_cbranch_scc1 L_gemv")
    def kload(i):
        if i and i % 4 == 0: A("s_add_u32 s%d, s%d, %d" % (sKO, sKO, step))
        A("buffer_load_dwordx4 %s, v%d, s[28:31], s%d offen offset:%d %s" % (v4(kslot(i)), vKO, sKO, (i % 4) * 1024, cfg.kv_flags), tag="K%d" % i)
    def kstream(D, first, barrier_after=None):
        for i in range(first, 32):
            if i - D >= first: A.wait_if("K%d" % (i - D))
            kload(i)
            if barrier_after is not None and i == barrier_after:
                A("s_barrier")
                stamp(2)
    def srds():
        A("s_waitcnt lgkmcnt(0)")
        A("s_mov_b32 s28, s%d" % sK); A("s_mov_b32 s29, s%d" % (sK + 1))
        A("s_mov_b32 s32, s%d" % sV); A("s_mov_b32 s33, s%d" % (sV + 1))
        A("s_load_dword s%d, %s, 0x%x" % (sTAG, sp(sWS), EPOFF))
        A("s_barrier")
        stamp(1)
    srds()
    A.vm = []
    kstream(cfg.D, 0)
    A("s_waitcnt lgkmcnt(0)")
    tags()
    A("s_branch L_join")
    def p3_pub_addr(dst, t0, t1):
        A("v_lshrrev_b32 v%d, 1, v%d" % (t0, vLANE))
        A("v_lshlrev_b32 v%d, 10, v%d" % (t0, t0))
        A("v_and_b32 v%d, 1, v%d" % (t1, vLANE))
        A("v_lshl_add_u32 v%d, v%d, 4, v%d" % (t0, t1, t0))
        A("s_lshl_b32 s%d, s%d, 16" % (sT0, sG))
        A("s_lshl_b32 s%d, s%d, 5" % (sT1, sSP))
        A("s_add_u32 s%d, s%d, s%d" % (sT0, sT0, sT1))
        A("s_add_u32 s%d, s%d, 0x%x" % (sT0, sT0, P3OFF))
        A("v_add_u32 v%d, s%d, v%d" % (dst, sT0, t0))
    def p4_pub_addr(dst, t0, t1):
        A("v_bfe_u32 v%d, v%d, 3, 1" % (t0, vLANE))
        A("v_lshlrev_b32 v%d, 17, v%d" % (t0, t0))
        A("v_lshrrev_b32 v%d, 4, v%d" % (t1, vLANE))
        A("v_lshl_add_u32 v%d, v%d, 13, v%d" % (t0, t1, t0))
        A("v_and_b32 v%d, 7, v%d" % (t1, vLANE))
        A("v_lshl_add_u32 v%d, v%d, 10, v%d" % (t0, t1, t0))
        A("s_lshl_b32 s%d, s%d, 15" % (sT0, sCB))
        A("s_lshl_b32 s%d, s%d, 4" % (sT1, sHH))
        A("s_add_u32 s%d, s%d, s%d" % (sT0, sT0, sT1))
        A("s_add_u32 s%d, s%d, 0x%x" % (sT0, sT0, P4OFF))
        A("v_add_u32 v%d, s%d, v%d" % (dst, sT0, t0))
    def ml_pub_addr(dst, h):
        A("s_lshl_b32 s%d, s%d, 11" % (sT0, sG))
        A("s_lshl_b32 s%d, s%d, 4" % (sT1, sSP))
        A("s_add_u32 s%d, s%d, s%d" % (sT0, sT0, sT1))
        A("s_add_u32 s%d, s%d, 0x%x" % (sT0, sT0, MLOFF))
        A("v_lshlrev_b32 v%d, 9, v%d" % (dst, h))
        A("v_add_u32 v%d, s%d, v%d" % (dst, sT0, dst))
    def qp_slot(dst):
        A("s_lshl_b32 s%d, s%d, 13" % (dst, sG))
        A("s_and_b32 s%d, s%d, 7" % (sT1, sSP))
        A("s_lshl_b32 s%d, s%d, 10" % (sT1, sT1))
        A("s_add_u32 s%d, s%d, s%d" % (dst, dst, sT1))
        A("s_lshr_b32 s%d, s%d, 3" % (sT1, sSP))
        A("s_lshl_b32 s%d, s%d, 8" % (sT1, sT1))
        A("s_add_u32 s%d, s%d, s%d" % (dst, dst, sT1))
    A.label("L_gemv")
    if cfg.prio: A("s_setprio %d" % cfg.prio)
    vW = vKS
    vXL, vXO, vSEL, vXP, vAa = 56, 60, 68, 76, 84
    vN = 96
    vDD = 92
    A("v_lshrrev_b32 v%d, 3, v%d" % (vT, vLANE))
    A("v_and_b32 v%d, 7, v%d" % (vT + 1, vLANE))
    A("s_mov_b32 s55, 0x20000")
    A("s_cmp_eq_u32 s%d, 0" % sW)
    A("s_cbranch_scc0 L_gemv_f")
    A("s_movk_i32 s%d, 0x2000" % sSTR)
    A("s_lshr_b32 s%d, s%d, 3" % (sQD, sSP))
    A("s_and_b32 s%d, s%d, 7" % (sT2, sSP))
    A("s_lshl_b32 s%d, s%d, 3" % (sT3, sG))
    A("s_add_u32 s%d, s%d, s%d" % (sT2, sT2, sT3))
    qp_slot(sPUB)
    A("s_mov_b32 s54, 0x400000")
    srds()
    A("s_mov_b32 s52, s%d" % sWQ); A("s_mov_b32 s53, s%d" % (sWQ + 1))
    A("s_branch L_gemv_go")
    A.label("L_gemv_f")
    A("s_movk_i32 s%d, 3584" % sSTR)
    A("s_and_b32 s%d, s2, 3" % sQD)
    A("s_lshr_b32 s%d, s2, 3" % sT2)
    A("s_lshl_b32 s%d, s2, 8" % sPUB)
    A("s_add_u32 s%d, s%d, 0x%x" % (sPUB, sPUB, FPOFF))
    A("s_mov_b32 s54, %d" % (512 * 3584))
    srds()
    A("s_bitcmp1_b32 s2, 2")
    A("s_cselect_b32 s52, s%d, s%d" % (sWU, sWG)); A("s_cselect_b32 s53, s%d, s%d" % (sWU + 1, sWG + 1))
    A("s_cmp_lt_u32 s2, 224")
    A("s_cbranch_scc1 L_gemv_go")
    A("s_waitcnt lgkmcnt(0)")
    tags()
    A("s_branch L_klate")
    A.label("L_gemv_go")
    A.vm = []
    A("global_load_dwordx4 %s, v%d, %s" % (v4(vXL), vL16, sp(sX)), tag="x")
    A("s_lshl_b32 s%d, s%d, 8" % (sT0, sQD))
    A("v_lshlrev_b32 v%d, 5, v%d" % (vT + 2, vT))
    A("v_add_u32 v%d, s%d, v%d" % (vT + 2, sT0, vT + 2))
    A("global_load_dwordx4 %s, v%d, %s" % (v4(vXO), vT + 2, sp(sX)), tag="x")
    A("global_load_dwordx4 %s, v%d, %s offset:16" % (v4(vXO + 4), vT + 2, sp(sX)), tag="x")
    A("s_lshl_b32 s%d, s%d, 4" % (sT0, sSTR))
    A("v_mul_lo_u32 v%d, v%d, s%d" % (vT + 3, vT, sT0))
    A("v_lshl_add_u32 v%d, v%d, 4, v%d" % (vT + 3, vT + 1, vT + 3))
    A("s_lshl_b32 s%d, s%d, 7" % (sT0, sQD))
    A("s_mul_i32 s%d, s%d, s%d" % (sT0, sT0, sSTR))
    A("s_lshl_b32 s%d, s%d, 7" % (sT2, sT2))
    A("s_add_u32 s%d, s%d, s%d" % (sT0, sT0, sT2))
    for t in range(16):
        A("buffer_load_dwordx4 %s, v%d, s[52:55], s%d offen %s" % (v4(vW + 4 * t), vT + 3, sT0, cfg.w_flags), tag="W%d" % t)
        if t < 15: A("s_add_u32 s%d, s%d, s%d" % (sT0, sT0, sSTR))
    stamp(2)
    A("v_and_b32 v%d, 1, v%d" % (vT + 2, vT + 1))
    A("v_cmp_eq_u32 vcc, 1, v%d" % (vT + 2))
    A("v_mov_b32 v%d, 0x0c0c0100" % (vT + 4)); A("v_mov_b32 v%d, 0x01000c0c" % (vT + 5))
    A("v_cndmask_b32 v%d, v%d, v%d, vcc" % (vT + 4, vT + 4, vT + 5))
    A("v_mov_b32 v%d, 0x0c0c0302" % (vT + 6)); A("v_mov_b32 v%d, 0x03020c0c" % (vT + 5))
    A("v_cndmask_b32 v%d, v%d, v%d, vcc" % (vT + 5, vT + 6, vT + 5))
    A("v_mov_b32 v%d, 0x0c0c0c0c" % (vT + 6))
    A("v_lshrrev_b32 v%d, 1, v%d" % (vT + 2, vT + 1))
    for k in range(4):
        A("v_cmp_eq_u32 vcc, %d, v%d" % (k, vT + 2))
        A("v_cndmask_b32 v%d, v%d, v%d, vcc" % (vSEL + 2 * k, vT + 6, vT + 4))
        A("v_cndmask_b32 v%d, v%d, v%d, vcc" % (vSEL + 2 * k + 1, vT + 6, vT + 5))
    A("v_bfe_u32 v%d, v%d, 4, 1" % (vT + 2, vLANE))
    A("v_lshl_add_u32 v%d, v%d, 1, v%d" % (vT + 2, vT + 1, vT + 2))
    A("v_lshlrev_b32 v%d, 4, v%d" % (vT + 2, vT + 2))
    A("v_add_u32 v%d, s%d, v%d" % (vT + 7, sPUB, vT + 2))
    A("s_waitcnt lgkmcnt(0)")
    tags()
    A.wait_vm("x")
    stamp(3)
    n = vN
    for k in range(4): unpack(n + 2 * k, n + 1 + 2 * k, vXL + k)
    m_, t_, v_, u_ = n + 8, n + 9, n + 10, n + 11
    A("v_add_f32 v%d, v%d, v%d" % (m_, n, n + 1)); A("v_add_f32 v%d, v%d, v%d" % (t_, n + 2, n + 3))
    A("v_add_f32 v%d, v%d, v%d" % (v_, n + 4, n + 5)); A("v_add_f32 v%d, v%d, v%d" % (u_, n + 6, n + 7))
    A("v_add_f32 v%d, v%d, v%d" % (m_, m_, t_)); A("v_add_f32 v%d, v%d, v%d" % (v_, v_, u_)); A("v_add_f32 v%d, v%d, v%d" % (m_, m_, v_))
    allred("v_add_f32", m_, t_)
    A("v_mul_f32 v%d, 0x3b000000, v%d" % (m_, m_))
    for k in range(8): A("v_sub_f32 v%d, v%d, v%d" % (n + k, n + k, m_))
    A("v_mul_f32 v%d, v%d, v%d" % (v_, n, n)); A("v_mul_f32 v%d, v%d, v%d" % (u_, n + 1, n + 1))
    for k in range(2, 8, 2):
        A("v_fmac_f32 v%d, v%d, v%d" % (v_, n + k, n + k)); A("v_fmac_f32 v%d, v%d, v%d" % (u_, n + k + 1, n + k + 1))
    A("v_add_f32 v%d, v%d, v%d" % (v_, v_, u_))
    allred("v_add_f32", v_, t_)
    A("v_mul_f32 v%d, 0x3b000000, v%d" % (v_, v_))
    rnd(m_, t_)
    rnd(v_, t_)
    A("v_add_f32 v%d, 0x%08x, v%d" % (v_, f2u(1e-5), v_))
    rnd(v_, t_)
    A("v_sqrt_f32 v%d, v%d" % (v_, v_))
    z = n + 12
    for k in range(8): unpack(z + 2 * k, z + 2 * k + 1, vXO + k)
    rnd(v_, t_)
    A("v_rcp_f32 v%d, v%d" % (u_, v_))
    for k in range(16): A("v_sub_f32 v%d, v%d, v%d" % (z + k, z + k, m_))
    for k in range(8): A("v_cvt_pk_bf16_f32 v%d, v%d, v%d" % (vXP + k, z + 2 * k, z + 2 * k + 1))
    for k in range(8): unpack(z + 2 * k, z + 2 * k + 1, vXP + k)
    for k in range(16):
        A("v_mul_f32 v%d, v%d, v%d" % (n + (k & 7), z + k, u_))
        A("v_fma_f32 v%d, -v%d, v%d, v%d" % (z + k, n + (k & 7), v_, z + k))
        A("v_fma_f32 v%d, v%d, v%d, v%d" % (z + k, z + k, u_, n + (k & 7)))
    for k in range(8): A("v_cvt_pk_bf16_f32 v%d, v%d, v%d" % (vXP + k, z + 2 * k, z + 2 * k + 1))
    stamp(4)
    def prepa(t):
        for k in range(4):
            A("v_perm_b32 v%d, v%d, v%d, v%d" % (vAa + 4 * (t & 1) + k, vXP + (t >> 1), vXP + (t >> 1), vSEL + 2 * k + (t & 1)))
    prepa(0)
    for t in range(16):
        if t < 15: prepa(t + 1)
        A.wait_vm("W%d" % t)
        A("v_mfma_f32_16x16x32_bf16 %s, %s, %s, %s" % (v4(vDD), v4(vAa + 4 * (t & 1)), v4(vW + 4 * t), "0" if t == 0 else v4(vDD)))
    stamp(5)
    for r in range(4): A("v_permlane32_swap_b32 v%d, v%d" % (vDD + r, n + r))
    for r in range(4):
        A("v_add_f32_dpp v%d, v%d, v%d row_ror:8 row_mask:0xf bank_mask:0xf" % (vDD + r, n + r, vDD + r))
    for r in range(4): settag(vDD + r)
    A("s_mov_b64 exec, 0x00ff00ff")
    A("global_store_dwordx4 v%d, %s, %s sc1" % (vT + 7, v4(vDD), sp(sWS)), count=False)
    exec_all()
    stamp(6)
    A("s_cmp_eq_u32 s%d, 0" % sW)
    A("s_cbranch_scc0 L_klate")
    A("v_lshrrev_b32 v%d, 4, v%d" % (vT + 2, vLANE))
    A("v_lshlrev_b32 v%d, 10, v%d" % (vT + 2, vT + 2))
    A("v_and_b32 v%d, 15, v%d" % (vT + 3, vLANE))
    A("v_lshl_add_u32 v%d, v%d, 4, v%d" % (vT + 2, vT + 3, vT + 2))
    A("s_lshl_b32 s%d, s%d, 13" % (sT1, sG))
    A("s_add_u32 s%d, s%d, 0x%x" % (sT1, sT1, QPOFF + 4096))
    A("v_add_u32 v%d, s%d, v%d" % (vT + 2, sT1, vT + 2))
    vG = 56
    A("s_mov_b32 s%d, 0" % sCNT)
    A.label("L_qchk")
    for u2 in range(2):
        for qd in range(4):
            A("global_load_dwordx4 %s, v%d, %s offset:%d sc1" % (v4(vG + 16 * u2 + 4 * qd), vT + 2, sp(sWS), u2 * 4096 + qd * 256 - 4096), count=False)
    A("s_waitcnt vmcnt(0)")
    badtag(range(vG, vG + 32), vT + 3, vT + 4)
    A("s_cbranch_vccz L_qok")
    spin_guard("L_qok")
    A("s_branch L_qchk")
    A.label("L_qok")
    for u2 in range(2):
        b = vG + 16 * u2
        for c in range(4):
            A("v_add_f32 v%d, v%d, v%d" % (b + c, b + c, b + 4 + c)); A("v_add_f32 v%d, v%d, v%d" % (b + 8 + c, b + 8 + c, b + 12 + c))
        for c in range(4): A("v_add_f32 v%d, v%d, v%d" % (b + c, b + c, b + 8 + c))
        A("v_cvt_pk_bf16_f32 v%d, v%d, v%d" % (b, b, b + 1)); A("v_cvt_pk_bf16_f32 v%d, v%d, v%d" % (b + 1, b + 2, b + 3))
    A("v_lshlrev_b32 v%d, 3, v%d" % (vT + 3, vLANE))
    A("v_mov_b32 v%d, 1" % (vT + 4))
    A("ds_write_b64 v%d, %s offset:%d" % (vT + 3, v2(vG), L_Q))
    A("ds_write_b64 v%d, %s offset:%d" % (vT + 3, v2(vG + 16), L_Q + 512))
    A("s_waitcnt lgkmcnt(0)")
    A("ds_write_b32 v%d, v%d offset:%d" % (vZ, vT + 4, F_Q))
    stamp(8)
    if cfg.prio: A("s_setprio 0")
    A.vm = []
    kstream(cfg.D0, 0)
    A("s_branch L_join")
    A.label("L_klate")
    if cfg.prio: A("s_setprio 0")
    A.vm = []
    kstream(cfg.D1, 0)
    A.label("L_join")
    A.vm = ["K%d" % i for i in range(32)]
    stamp(9)
    seq = ["K%d" % i for i in range(32)]
    vnext = [0]
    def vissue(n=1):
        for _ in range(n):
            m = vnext[0]
            if m >= 32: return
            vnext[0] += 1
            A.wait_if(seq[len(seq) - cfg.DV])
            if m and m % 4 == 0: A("s_add_u32 s%d, s%d, %d" % (sVO, sVO, step))
            A("buffer_load_dwordx4 %s, v%d, s[32:35], s%d offen offset:%d %s" % (v4(vslot(m)), vL16, sVO, (m % 4) * 1024, cfg.kv_flags), tag="V%d" % m)
            seq.append("V%d" % m)
    vissue(1)
    A("s_mov_b32 s%d, 0x%08x" % (sC, f2u(1.4426950408889634)))
    A("s_mov_b32 s%d, 0x%08x" % (sSCL, f2u(128 ** -0.5)))
    A("v_bfe_u32 v%d, v%d, 2, 1" % (vT, vLANE))
    A("v_lshlrev_b32 v%d, 4, v%d" % (vT, vT))
    A("v_mov_b32 v%d, 0xffff" % (vT + 1))
    A("v_lshlrev_b32 v%d, v%d, v%d" % (vHM, vT, vT + 1))
    A("v_and_b32 v%d, 1, v%d" % (vT, vLANE))
    A("v_lshlrev_b32 v%d, 4, v%d" % (vT, vT))
    A("v_lshlrev_b32 v%d, v%d, v%d" % (vT + 2, vT, vT + 1))
    A("v_bfe_u32 v%d, v%d, 1, 3" % (vT, vLANE))
    for k in range(8):
        A("v_cmp_eq_u32 vcc, %d, v%d" % (k, vT))
        A("v_cndmask_b32 v%d, 0, v%d, vcc" % (vMK + k, vT + 2))
    vissue(1)
    p3_pub_addr(vA0, vT, vT + 1)
    p4_pub_addr(vA1, vT, vT + 1)
    vissue(1)
    A("s_lshr_b32 s%d, s%d, 1" % (sT0, sHH))
    A("s_lshl_b32 s%d, s%d, 7" % (sT0, sT0))
    A("s_lshr_b32 s%d, s%d, 1" % (sT1, sW))
    A("s_lshl_b32 s%d, s%d, 5" % (sT1, sT1))
    A("s_add_u32 s%d, s%d, s%d" % (sT0, sT0, sT1))
    A("s_and_b32 s%d, s%d, 1" % (sT1, sHH))
    A("s_lshl_b32 s%d, s%d, 2" % (sT1, sT1))
    A("s_add_u32 s%d, s%d, s%d" % (sT0, sT0, sT1))
    A("s_and_b32 s%d, s%d, 1" % (sT1, sW))
    A("s_lshl_b32 s%d, s%d, 1" % (sT1, sT1))
    A("s_add_u32 s%d, s%d, s%d" % (sT0, sT0, sT1))
    A("s_lshl_b32 s%d, s%d, 10" % (sT0, sT0))
    A("s_lshl_b32 s%d, s%d, 8" % (sT1, sCB))
    A("s_add_u32 s%d, s%d, s%d" % (sT0, sT0, sT1))
    aWO, aWD, aH, aML, aP3, aLO, aXF, aQ = vT, vT + 1, vT + 2, vT + 3, vT + 4, vT + 5, vT + 6, vT + 7
    t8, t9 = vT + 8, vT + 9
    A("v_lshrrev_b32 v%d, 4, v%d" % (t8, vLANE))
    A("v_and_b32 v%d, 15, v%d" % (t9, vLANE))
    A("v_lshlrev_b32 v%d, 4, v%d" % (t9, t9))
    A("v_lshl_add_u32 v%d, v%d, 13, v%d" % (aWO, t8, t9))
    A("v_add_u32 v%d, s%d, v%d" % (aWO, sT0, aWO))
    A("s_mul_i32 s%d, s%d, 28" % (sT0, sHH))
    A("s_min_u32 s%d, s%d, 6" % (sT2, sW))
    A("s_lshl_b32 s%d, s%d, 2" % (sT2, sT2))
    A("s_add_u32 s%d, s%d, s%d" % (sT0, sT0, sT2))
    A("s_lshl_b32 s%d, s%d, 10" % (sT2, sT0))
    A("s_add_u32 s%d, s%d, s%d" % (sT2, sT2, sT1))
    A("v_lshl_add_u32 v%d, v%d, 10, v%d" % (aWD, t8, t9))
    A("v_add_u32 v%d, s%d, v%d" % (aWD, sT2, aWD))
    A("v_add_u32 v%d, s%d, v%d" % (t9, sT0, t8))
    A("v_lshrrev_b32 v%d, 6, v%d" % (aH, t9))
    A("v_lshlrev_b32 v%d, 11, v%d" % (aH, aH))
    A("v_and_b32 v%d, 63, v%d" % (t9, t9))
    A("v_lshl_add_u32 v%d, v%d, 2, v%d" % (aH, t9, aH))
    A("v_and_b32 v%d, 7, v%d" % (t9, vLANE))
    A("v_lshl_add_u32 v%d, v%d, 8, v%d" % (aH, t9, aH))
    A("v_add_u32 v%d, 0x%x, v%d" % (aH, FPOFF, aH))
    vissue(1)
    A("v_lshrrev_b32 v%d, 1, v%d" % (aML, vLANE))
    A("v_lshlrev_b32 v%d, 4, v%d" % (aML, aML))
    A("s_lshr_b32 s%d, s%d, 1" % (sT0, sHH))
    A("s_lshl_b32 s%d, s%d, 9" % (sT0, sT0))
    A("s_add_u32 s%d, s%d, 0x%x" % (sT0, sT0, MLOFF))
    A("v_add_u32 v%d, s%d, v%d" % (aML, sT0, aML))
    A("s_lshl_b32 s%d, s%d, 3" % (sT0, sHH))
    A("s_add_u32 s%d, s%d, s%d" % (sT0, sT0, sW))
    A("s_lshl_b32 s%d, s%d, 10" % (sT0, sT0))
    A("s_add_u32 s%d, s%d, 0x%x" % (sT0, sT0, P3OFF))
    A("v_add_u32 v%d, s%d, v%d" % (aP3, sT0, vL16))
    A("v_and_b32 v%d, 3, v%d" % (aLO, vLANE))
    A("v_lshlrev_b32 v%d, 9, v%d" % (aLO, aLO))
    A("v_lshl_add_u32 v%d, v%d, 6, v%d" % (aLO, t8, aLO))
    A("v_bfe_u32 v%d, v%d, 2, 2" % (t9, vLANE))
    A("v_lshl_add_u32 v%d, v%d, 4, v%d" % (aLO, t9, aLO))
    A("v_and_b32 v%d, 3, v%d" % (aQ, vLANE))
    A("v_lshlrev_b32 v%d, 8, v%d" % (aQ, aQ))
    A("v_lshl_add_u32 v%d, v%d, 6, v%d" % (aQ, t8, aQ))
    A("v_lshl_add_u32 v%d, v%d, 4, v%d" % (aQ, t9, aQ))
    A("s_lshl_b32 s%d, s%d, 11" % (sT0, sW))
    A("v_add_u32 v%d, s%d, v%d" % (aLO, sT0, aLO))
    A("s_and_b32 s%d, s2, 127" % sT0)
    A("s_lshr_b32 s%d, s%d, 3" % (sT1, sT0))
    A("s_lshl_b32 s%d, s%d, 5" % (sT1, sT1))
    A("s_and_b32 s%d, s%d, 7" % (sT0, sT0))
    A("s_add_u32 s%d, s%d, s%d" % (sT0, sT0, sT1))
    A("v_lshlrev_b32 v%d, 3, v%d" % (aXF, t8))
    A("v_add_u32 v%d, s%d, v%d" % (aXF, sT0, aXF))
    A("v_lshlrev_b32 v%d, 1, v%d" % (aXF, aXF))
    vissue(cfg.nvb - vnext[0])
    lds_wait("qw", F_Q, 1, t8)
    A("ds_read_b128 %s, v%d offset:%d" % (v4(vQ), aQ, L_Q))
    A.wait_if("K31")
    A("s_waitcnt lgkmcnt(0)")
    stamp(10)
    def qk(t): A("v_mfma_f32_16x16x32_bf16 %s, %s, %s, 0" % (v4(kslot(t)), v4(kslot(t)), v4(vQ)))
    def extr(a, r, k):
        d = kslot(4 * k + a) + r
        rot = (4 * (a - r)) % 16
        ctl = "row_ror:%d" % rot if rot else "quad_perm:[0,1,2,3]"
        if r == 0: A("v_mov_b32_dpp v%d, v%d %s row_mask:0xf bank_mask:0x%x" % (vR + k, d, ctl, 1 << a))
        else: A("v_add_f32_dpp v%d, v%d, v%d %s row_mask:0xf bank_mask:0x%x" % (vR + k, d, vR + k, ctl, 1 << a))
    for k in range(8): qk(4 * k)
    w2 = cfg.w2_flags
    for a in range(4):
        for r in range(4):
            for k in range(8):
                extr(a, r, k)
                if a < 3 and k % 4 == 3: qk(4 * (2 * r + k // 4) + a + 1)
            if r % 2 == 1: vissue(1)
    A("global_load_dwordx4 %s, v%d, %s %s" % (v4(vWO0), aWO, sp(sWO), w2), tag="wo"); seq.append("wo")
    for i in range(4):
        a, b = vR + 2 * i, vR + 2 * i + 1
        t = t8 + (i & 1)
        A("v_cvt_pk_bf16_f32 v%d, v%d, v%d" % (t, a, b))
        unpack(a, b, t)
        A("v_mul_f32 v%d, s%d, v%d" % (a, sSCL, a)); A("v_mul_f32 v%d, s%d, v%d" % (b, sSCL, b))
        A("v_cvt_pk_bf16_f32 v%d, v%d, v%d" % (t, a, b))
        unpack(a, b, t)
    A.wait_if(seq[len(seq) - cfg.DV])
    A("global_load_dwordx4 %s, v%d, %s offset:1024 %s" % (v4(vWO1), aWO, sp(sWO), w2), tag="wo1"); seq.append("wo1")
    vMx, vL, vTm, vNm = vS[0], vS[0] + 1, vS[0] + 2, vS[0] + 3
    A("v_max3_f32 v%d, v%d, v%d, v%d" % (vMx, vR, vR + 1, vR + 2))
    A("v_max3_f32 v%d, v%d, v%d, v%d" % (vTm, vR + 3, vR + 4, vR + 5))
    A("v_max3_f32 v%d, v%d, v%d, v%d" % (vMx, vMx, vR + 6, vR + 7))
    A("v_max_f32 v%d, v%d, v%d" % (vMx, vMx, vTm))
    allred("v_max_f32", vMx, vTm, rors=(8, 4))
    A("v_mul_f32 v%d, s%d, v%d" % (vNm, sC, vMx))
    for k in range(8): A("v_fma_f32 v%d, v%d, s%d, -v%d" % (vR + k, vR + k, sC, vNm))
    for k in range(8): A("v_exp_f32 v%d, v%d" % (vR + k, vR + k))
    A.wait_if(seq[len(seq) - cfg.DV])
    A("global_load_dwordx4 %s, v%d, %s %s" % (v4(vWD), aWD, sp(sWD), w2), tag="wd"); seq.append("wd")
    A("v_add_f32 v%d, v%d, v%d" % (vL, vR, vR + 1))
    A("v_add_f32 v%d, v%d, v%d" % (vTm, vR + 2, vR + 3))
    for k in range(4, 8, 2):
        A("v_add_f32 v%d, v%d, v%d" % (vL, vL, vR + k)); A("v_add_f32 v%d, v%d, v%d" % (vTm, vTm, vR + k + 1))
    A("v_add_f32 v%d, v%d, v%d" % (vL, vL, vTm))
    for k in range(8): A("v_cvt_pk_bf16_f32 v%d, v%d, v%d" % (vR + k, vR + k, vR + k))
    allred("v_add_f32", vL, vTm, rors=(8, 4))
    A("v_lshlrev_b32 v%d, 6, v%d" % (vTm, vLANE))
    A("s_lshl_b32 s%d, s%d, 3" % (sT0, sW))
    A("v_add_u32 v%d, s%d, v%d" % (vTm, sT0, vTm))
    A("v_mov_b32 v%d, 1" % vNm)
    A("s_mov_b64 exec, 0xf")
    A("ds_write_b64 v%d, %s offset:%d" % (vTm, v2(vMx), L_ML))
    A("s_mov_b64 exec, 1")
    A("ds_add_rtn_u32 v%d, v%d, v%d offset:%d" % (vNm, vZ, vNm, F_CNT))
    exec_all()
    stamp(11)
    vissue(1)
    A("s_waitcnt lgkmcnt(0)")
    A("v_readfirstlane_b32 s%d, v%d" % (sT0, vNm))
    A("s_cmp_eq_u32 s%d, 7" % sT0)
    A("s_cbranch_scc0 L_noml")
    A("v_and_b32 v%d, 3, v%d" % (vTm, vLANE))
    A("v_lshlrev_b32 v%d, 6, v%d" % (vNm, vTm))
    q = [vS[1], vS[2], vS[3], vP]
    for k in range(4): A("ds_read_b128 %s, v%d offset:%d" % (v4(q[k]), vNm, L_ML + 16 * k))
    ml_pub_addr(t8, vTm)
    A("v_lshlrev_b32 v%d, 5, v%d" % (t9, vTm))
    A("s_waitcnt lgkmcnt(0)")
    mm = [q[k >> 1] + 2 * (k & 1) for k in range(8)]
    ff = [vF0 + k for k in range(4)] + [vF1 + k for k in range(4)]
    A("v_max3_f32 v%d, v%d, v%d, v%d" % (vMx, mm[0], mm[1], mm[2]))
    A("v_max3_f32 v%d, v%d, v%d, v%d" % (vMx, vMx, mm[3], mm[4]))
    A("v_max3_f32 v%d, v%d, v%d, v%d" % (vMx, vMx, mm[5], mm[6]))
    A("v_max_f32 v%d, v%d, v%d" % (vMx, vMx, mm[7]))
    for k in range(8): A("v_sub_f32 v%d, v%d, v%d" % (ff[k], mm[k], vMx))
    for k in range(8): A("v_mul_f32 v%d, s%d, v%d" % (ff[k], sC, ff[k]))
    for k in range(8): A("v_exp_f32 v%d, v%d" % (ff[k], ff[k]))
    A("v_mul_f32 v%d, v%d, v%d" % (vL, ff[0], mm[0] + 1))
    for k in range(1, 8): A("v_fmac_f32 v%d, v%d, v%d" % (vL, ff[k], mm[k] + 1))
    settag(vMx); settag(vL)
    A("v_mov_b32 v%d, s%d" % (vTm, sTAG)); A("v_mov_b32 v%d, s%d" % (vNm, sTAG))
    A("s_mov_b64 exec, 0xf")
    A("global_store_dwordx4 v%d, %s, %s sc1" % (t8, v4(vMx), sp(sWS)), count=False)
    A("ds_write_b128 v%d, %s offset:%d" % (t9, v4(vF0), L_F))
    A("ds_write_b128 v%d, %s offset:%d" % (t9, v4(vF1), L_F + 16))
    exec_all()
    A.label("L_noml")
    A.fence(2)
    stamp(12)
    def prepx(m, e2):
        x = vX + 4 * (m & 1)
        a = m & 3
        rot = (4 * (e2 - a)) % 16
        ctl = "row_ror:%d" % rot if rot else "quad_perm:[0,1,2,3]"
        A("v_and_b32_dpp v%d, v%d, v%d %s row_mask:0xf bank_mask:0x%x" % (x + 2 + (e2 >> 1), vR + (m >> 2), vHM, ctl, 1 << e2))
    def side_work():
        A.wait_if("xf")
        A("s_mov_b32 s%d, 0" % sCNT)
        A.label("L_mlchk")
        badtag([vML, vML + 1, vH], t8, t9, extra=vML + 2)
        A("s_cbranch_vccz L_mlok")
        spin_guard("L_mlok")
        A("s_sleep 1")
        A("global_load_dwordx4 %s, v%d, %s sc1" % (v4(vML), aML, sp(sWS)), count=False)
        A("global_load_dword v%d, v%d, %s sc1" % (vH, aH, sp(sWS)), count=False)
        A("s_waitcnt vmcnt(0)")
        A("s_branch L_mlchk")
        A.label("L_mlok")
        g_, u_, a_, b_ = vS[1], vS[1] + 1, vS[1] + 2, vS[1] + 3
        A("v_add_f32_dpp v%d, v%d, v%d quad_perm:[1,0,3,2] row_mask:0xf bank_mask:0xf" % (vH, vH, vH))
        A("v_and_b32 v%d, s%d, v%d" % (vML, sNM, vML))
        A("v_mov_b32 v%d, v%d" % (vWT, vML))
        A("v_add_f32_dpp v%d, v%d, v%d quad_perm:[2,3,0,1] row_mask:0xf bank_mask:0xf" % (vH, vH, vH))
        dpp("v_max_f32", vWT, 8)
        A("v_mov_b32 v%d, v%d" % (g_, vH)); A("v_mov_b32 v%d, v%d" % (u_, vH))
        dpp("v_max_f32", vWT, 4)
        A("v_mov_b32_dpp v%d, v%d row_ror:4 row_mask:0xf bank_mask:0xa" % (g_, vH))
        A("v_mov_b32_dpp v%d, v%d row_ror:4 row_mask:0xf bank_mask:0x5" % (u_, vH))
        dpp("v_max_f32", vWT, 2)
        rnd(g_, a_); rnd(u_, b_)
        xrows("v_max_f32", vWT, vWT + 1)
        c1 = -2.0 * 1.4426950408889634 * 0.7978845608028654
        c2 = c1 * 0.044715
        A("v_mul_f32 v%d, v%d, v%d" % (a_, g_, g_))
        A("v_mov_b32 v%d, 0x%08x" % (b_, f2u(c1)))
        A("v_fmac_f32 v%d, 0x%08x, v%d" % (b_, f2u(c2), a_))
        A("v_sub_f32 v%d, v%d, v%d" % (vWT, vML, vWT))
        A("v_mul_f32 v%d, v%d, v%d" % (b_, b_, g_))
        A("v_mul_f32 v%d, s%d, v%d" % (vWT, sC, vWT))
        A("v_exp_f32 v%d, v%d" % (b_, b_))
        A("v_exp_f32 v%d, v%d" % (vWT, vWT))
        A("v_add_f32 v%d, 1.0, v%d" % (b_, b_))
        A("v_mul_f32 v%d, v%d, v%d" % (vWT + 2, vWT, vML + 1))
        A("v_rcp_f32 v%d, v%d" % (b_, b_))
        dpp("v_add_f32", vWT + 2, 8)
        A("v_mul_f32 v%d, v%d, v%d" % (g_, g_, b_))
        rnd(g_, a_)
        dpp("v_add_f32", vWT + 2, 4)
        A("v_mul_f32 v%d, v%d, v%d" % (g_, g_, u_))
        A("v_cvt_pk_bf16_f32 v%d, v%d, v%d" % (g_, g_, g_))
        dpp("v_add_f32", vWT + 2, 2)
        A("s_cmp_lt_u32 s%d, 7" % sW)
        A("s_cselect_b32 s%d, -1, 0" % sT0)
        A("v_and_b32 v%d, s%d, v%d" % (g_, sT0, g_))
        for k in range(4): A("v_and_b32 v%d, v%d, v%d" % (vB + k, g_, vMK + 4 + k))
        xrows("v_add_f32", vWT + 2, vWT + 1)
        A("v_mfma_f32_16x16x32_bf16 %s, %s, %s, 0" % (v4(vD), v4(vWD), v4(vB)))
        A("v_rcp_f32 v%d, v%d" % (vWT + 2, vWT + 2))
        A("v_mul_f32 v%d, v%d, v%d" % (vWT, vWT, vWT + 2))
    for e2 in (0, 2, 1, 3): prepx(0, e2)
    side_done = False
    mlat = cfg.mlat if cfg.mlat >= 0 else 31 - 2 * cfg.DV
    for m in range(32):
        x = vX + 4 * (m & 1)
        if m == mlat:
            A("global_load_dwordx4 %s, v%d, %s sc1" % (v4(vML), aML, sp(sWS)), tag="ml")
            A("global_load_dword v%d, v%d, %s sc1" % (vH, aH, sp(sWS)), tag="h")
            A("global_load_ushort v%d, v%d, %s" % (vXF, aXF, sp(sX)), tag="xf")
        A.wait_if("V%d" % m)
        while vnext[0] < 32 and vnext[0] <= m + cfg.DV: vissue(1)
        if m > mlat and "xf" not in A.vm and not side_done:
            side_work(); side_done = True
        if m < 31: prepx(m + 1, 0); prepx(m + 1, 2)
        A("v_mfma_f32_16x16x32_bf16 %s, %s, %s, %s" % (v4(vACC), v4(vslot(m)), v4(x + 2), "0" if m == 0 else v4(vACC)))
        if m < 31: prepx(m + 1, 1); prepx(m + 1, 3)
        A("v_mfma_f32_16x16x32_bf16 %s, %s, %s, %s" % (v4(vACC + 4), v4(vslot(m)), v4(x), "0" if m == 0 else v4(vACC + 4)))
    assert side_done
    stamp(13)
    A("ds_write_b128 v%d, %s offset:%d" % (aLO, v4(vACC), L_OP))
    A("ds_write_b128 v%d, %s offset:%d" % (aLO, v4(vACC + 4), L_OP + 256))
    A("s_lshl_b32 s%d, s%d, 10" % (sT0, sW))
    A("v_add_u32 v%d, s%d, v%d" % (t8, sT0, vL16))
    A("v_lshrrev_b32 v%d, 9, v%d" % (t9, t8))
    A("v_lshlrev_b32 v%d, 5, v%d" % (t9, t9))
    A("s_waitcnt lgkmcnt(0)")
    A("s_barrier")
    A("s_cmp_gt_u32 s%d, 1" % sW)
    A("s_cbranch_scc1 L_nop3")
    rr = vVI
    A("ds_read_b128 %s, v%d offset:%d" % (v4(vF0), t9, L_F))
    A("ds_read_b128 %s, v%d offset:%d" % (v4(vF1), t9, L_F + 16))
    for k in range(8): A("ds_read_b128 %s, v%d offset:%d" % (v4(rr + 4 * k), t8, L_OP + 2048 * k))
    A("s_lshl_b32 s%d, s%d, 15" % (sT0, sW))
    A("v_add_u32 v%d, s%d, v%d" % (vA0, sT0, vA0))
    for k in range(8):
        A("s_waitcnt lgkmcnt(%d)" % (7 - k))
        for c in range(4):
            if k == 0: A("v_mul_f32 v%d, v%d, v%d" % (rr + c, rr + c, ff[0]))
            else: A("v_fmac_f32 v%d, v%d, v%d" % (rr + c, rr + 4 * k + c, ff[k]))
    for c in range(4): settag(rr + c)
    A("global_store_dwordx4 v%d, %s, %s sc1" % (vA0, v4(rr), sp(sWS)), count=False)
    A.label("L_nop3")
    A.fence(2)
    stamp(14)
    A("s_mov_b32 s%d, 0" % sCNT)
    A.label("L_p3chk")
    A("global_load_dwordx4 %s, v%d, %s sc1" % (v4(vP), aP3, sp(sWS)), count=False)
    A("s_waitcnt vmcnt(0)")
    badtag(range(vP, vP + 4), t8, t9)
    A("s_cbranch_vccz L_p3ok")
    spin_guard("L_p3ok")
    if cfg.slp3: A("s_sleep %d" % cfg.slp3)
    A("s_branch L_p3chk")
    A.label("L_p3ok")
    stamp(15)
    cntstamp(7)
    for c in range(4): A("v_mul_f32 v%d, v%d, v%d" % (vP + c, vP + c, vWT))
    def rs4(p, rors):
        A("v_permlane32_swap_b32 v%d, v%d" % (p, p + 2))
        A("v_permlane32_swap_b32 v%d, v%d" % (p + 1, p + 3))
        A("v_add_f32 v%d, v%d, v%d" % (p, p, p + 2))
        A("v_add_f32 v%d, v%d, v%d" % (p + 1, p + 1, p + 3))
        A("v_permlane16_swap_b32 v%d, v%d" % (p, p + 1))
        A("v_add_f32 v%d, v%d, v%d" % (p, p, p + 1))
        for n in rors: dpp("v_add_f32", p, n)
    rs4(vP, (8, 4, 2))
    A("v_cvt_pk_bf16_f32 v%d, v%d, v%d" % (vP, vP, vP))
    for k in range(4):
        A("v_and_b32_dpp v%d, v%d, v%d quad_perm:[0,0,2,2] row_mask:0xf bank_mask:0xf" % (vB + k, vP, vMK + k))
    for k in range(4):
        A("v_and_b32_dpp v%d, v%d, v%d quad_perm:[1,1,3,3] row_mask:0xf bank_mask:0xf" % (vB2 + k, vP, vMK + k))
    A("v_mfma_f32_16x16x32_bf16 %s, %s, %s, %s" % (v4(vD), v4(vWO0), v4(vB), v4(vD)))
    A("v_mfma_f32_16x16x32_bf16 %s, %s, %s, %s" % (v4(vD), v4(vWO1), v4(vB2), v4(vD)))
    A("s_lshl_b32 s%d, s%d, 10" % (sT0, sW))
    A("v_add_u32 v%d, s%d, v%d" % (t8, sT0, vL16))
    A("ds_write_b128 v%d, %s offset:%d" % (t8, v4(vD), L_SP))
    A("s_waitcnt lgkmcnt(0)")
    A("s_barrier")
    A("s_cmp_lg_u32 s%d, 0" % sW)
    A("s_cbranch_scc1 L_end2")
    for k in range(8): A("ds_read_b128 %s, v%d offset:%d" % (v4(rr + 4 * k), vL16, L_SP + 1024 * k))
    for k in range(1, 8):
        A("s_waitcnt lgkmcnt(%d)" % (7 - k))
        for c in range(4): A("v_add_f32 v%d, v%d, v%d" % (rr + c, rr + c, rr + 4 * k + c))
    for c in range(4): settag(rr + c)
    A("global_store_dwordx4 v%d, %s, %s sc1" % (vA1, v4(rr), sp(sWS)), count=False)
    stamp(16)
    A("s_cmp_ge_u32 s2, 128")
    A("s_cbranch_scc1 L_end2")
    A("s_lshl_b32 s%d, s2, 10" % sT0)
    A("s_add_u32 s%d, s%d, 0x%x" % (sT0, sT0, P4OFF))
    A("v_add_u32 v%d, s%d, v%d" % (vT, sT0, vL16))
    A("v_add_u32 v%d, 0x20000, v%d" % (vT + 1, vT))
    A("s_mov_b32 s%d, 0" % sCNT)
    A.label("L_p4poll")
    A("global_load_dwordx4 %s, v%d, %s sc1" % (v4(vP), vT, sp(sWS)), count=False)
    A("global_load_dwordx4 %s, v%d, %s sc1" % (v4(vPY), vT + 1, sp(sWS)), count=False)
    A("s_waitcnt vmcnt(0)")
    badtag(list(range(vP, vP + 4)) + list(range(vPY, vPY + 4)), t8, t9)
    A("s_cbranch_vccz L_p4ok")
    A("s_add_u32 s%d, s%d, 1" % (sCNT, sCNT))
    A("s_cmp_gt_u32 s%d, %d" % (sCNT, cfg.spin_max))
    A("s_cbranch_scc0 L_p4poll")
    A.label("L_p4ok")
    stamp(17)
    cntstamp(18)
    p, y = vP, vPY
    for r in (p, y):
        A("v_permlane32_swap_b32 v%d, v%d" % (r, r + 2))
        A("v_permlane32_swap_b32 v%d, v%d" % (r + 1, r + 3))
    for r in (p, y):
        A("v_add_f32 v%d, v%d, v%d" % (r, r, r + 2))
        A("v_add_f32 v%d, v%d, v%d" % (r + 1, r + 1, r + 3))
    for r in (p, y): A("v_permlane16_swap_b32 v%d, v%d" % (r, r + 1))
    for r in (p, y): A("v_add_f32 v%d, v%d, v%d" % (r, r, r + 1))
    for n in (8, 4, 2, 1):
        for r in (p, y): dpp("v_add_f32", r, n)
    rnd(y, y + 1); rnd(p, p + 1)
    A("v_mul_f32 v%d, s%d, v%d" % (y + 2, sC, y))
    A("v_exp_f32 v%d, -v%d" % (y + 2, y + 2))
    A("v_add_f32 v%d, 1.0, v%d" % (y + 2, y + 2))
    A("v_rcp_f32 v%d, v%d" % (y + 2, y + 2))
    A("v_mul_f32 v%d, v%d, v%d" % (y, y, y + 2))
    rnd(y, y + 1)
    A("v_mul_f32 v%d, v%d, v%d" % (p, p, y))
    rnd(p, p + 1)
    A("v_lshlrev_b32 v%d, 16, v%d" % (vXF, vXF))
    A("v_add_f32 v%d, v%d, v%d" % (p, p, vXF))
    A("v_cvt_pk_bf16_f32 v%d, v%d, v%d" % (p, p, p))
    A("s_mov_b32 exec_lo, 0x00010001"); A("s_mov_b32 exec_hi, 0x00010001")
    A("global_store_short v%d, v%d, %s" % (aXF, p, sp(sOUT)), count=False)
    A("s_cmp_lg_u32 s2, 0")
    A("s_cbranch_scc1 L_end2")
    A("s_mov_b64 exec, 1")
    A("v_mov_b32 v%d, 0x%x" % (t8, EPOFF))
    A("v_mov_b32 v%d, s%d" % (t9, sTAG))
    A("global_store_dword v%d, v%d, %s sc1" % (t8, t9, sp(sWS)), count=False)
    A.label("L_end2")
    if cfg.stamps:
        stamp(NST - 1)
        exec_all()
        A("s_waitcnt lgkmcnt(0)")
        A("s_lshl_b32 s%d, s2, 3" % sT0)
        A("s_add_u32 s%d, s%d, s%d" % (sT0, sT0, sW))
        A("s_lshl_b32 s%d, s%d, 8" % (sT0, sT0))
        A("s_add_u32 s%d, s%d, 0x200000" % (sT0, sT0))
        A("v_mov_b32 v%d, s%d" % (vT, sT0))
        A("s_mov_b64 exec, 1")
        for k in range(NST):
            A("v_mov_b32 v%d, s%d" % (vT + 4, 60 + 2 * k)); A("v_mov_b32 v%d, s%d" % (vT + 5, 61 + 2 * k))
            A("global_store_dwordx2 v%d, %s, %s offset:%d" % (vT, v2(vT + 4), sp(sWS), 8 * k), count=False)
            A("s_nop 1")
        if cfg.probe >= 0:
            A("s_cmp_lg_u32 s%d, 0" % sW)
            A("s_cbranch_scc1 L_end")
            A("s_sub_u32 s%d, s%d, s60" % (sT0, 60 + 2 * cfg.probe))
            A("s_min_u32 s%d, s%d, 20000" % (sT0, sT0))
            A("s_mul_i32 s%d, s%d, 10" % (sT0, sT0))
            A("s_add_u32 s%d, s%d, s%d" % (sT0, sT0, 60 + 2 * (NST - 1)))
            A.label("L_probe")
            A("s_memrealtime s[56:57]")
            A("s_waitcnt lgkmcnt(0)")
            A("s_sub_u32 s%d, s%d, s56" % (sT1, sT0))
            A("s_cmp_gt_i32 s%d, 0" % sT1)
            A("s_cbranch_scc1 L_probe")
    A.label("L_end")
    return A

HEADER = open("cdna_kernels/%s.s.ref" % NAME).read().split("; Override launch geometry")[0]

def build(cfg, path):
    A = gen(cfg)
    s = HEADER
    s += "; @launch grid=(256,1,1) block=(512,1,1) lds=%d\n" % L_END
    s += '.amdgcn_target "amdgcn-amd-amdhsa--gfx950"\n.text\n.globl %s_kernel\n.p2align 8\n.type %s_kernel,@function\n%s_kernel:\n' % (NAME, NAME, NAME)
    s += A.text()
    s += "s_endpgm\n"
    s += """.section .rodata,"a"
.p2align 6
.amdhsa_kernel %s_kernel
  .amdhsa_next_free_vgpr 256
  .amdhsa_next_free_sgpr 102
  .amdhsa_accum_offset 256
  .amdhsa_group_segment_fixed_size 0
  .amdhsa_kernarg_size 96
  .amdhsa_user_sgpr_count 2
  .amdhsa_user_sgpr_kernarg_segment_ptr 1
  .amdhsa_system_sgpr_workgroup_id_x 1
.end_amdhsa_kernel
""" % NAME
    open(path, "w").write(s)
    return A

if __name__ == "__main__":
    cfg = Cfg()
    out = "cdna_kernels/%s.s" % NAME
    for a in sys.argv[1:]:
        k, v = a.split("=", 1)
        if k == "out": out = v; continue
        cur = getattr(cfg, k)
        setattr(cfg, k, type(cur)(int(v)) if isinstance(cur, (bool, int)) else v)
    A = build(cfg, out)
    print("wrote", out, "lines", len(A.out), "auto nops", A.nops_added)
```
